```python
import torch

def _softmax(x, axis=-1):
    return torch.softmax(x, dim=axis)
def _gelu(x):
    return torch.nn.functional.gelu(x, approximate="tanh")
def _silu(x):
    return torch.nn.functional.silu(x)
def _sigmoid(x):
    return torch.sigmoid(x)
def _layernorm(x, axis=-1, eps=1e-5):
    m = x.mean(dim=axis, keepdim=True)
    v = x.var(dim=axis, keepdim=True, unbiased=False)
    return (x - m) / torch.sqrt(v + eps)
def _scatter_add(tgt, idx, src, axis=0):
    return tgt.clone().index_add_(axis, idx, src)
def _segment_sum(src, seg, n):
    out = torch.zeros((n,) + src.shape[1:], dtype=src.dtype)
    return out.index_add_(0, seg, src)
def _pad(x, pw):
    flat = tuple(v for pair in reversed(pw) for v in pair)
    return torch.nn.functional.pad(x, flat)

kernel_name = 'standalone__se_block__vision'

def setup_inputs():

    _w = (lambda a: (lambda t: t.to(torch.bfloat16) if t.is_floating_point() else t)(torch.as_tensor(a)))
    H = W = 512
    C = 96; r = max(C // 16, 4)
    return {
        "x": _w((lambda *s: torch.randn(*s, dtype=torch.bfloat16) * 3.2)(1, H, W, C)),
        "w_down": _w((lambda *s: torch.randn(*s, dtype=torch.bfloat16) * 12.8)(C, r)),
        "w_up": _w((lambda *s: torch.randn(*s, dtype=torch.bfloat16) * 3.2)(r, C)),
    }

def reference(x, w_down, w_up):
    s = x.mean(axis=(1, 2))
    s = _sigmoid(_silu(s @ w_down) @ w_up)
    return x * s[:, None, None, :]
```

```python
import sys, argparse

HEADER = """; Kernarg layout for this problem (48 bytes, ptrs only, base s[0:1]):
"""
NAME = "standalone__se_block__vision_kernel"
TOTAL = 50331648
NWG = 256
PERWG = TOTAL // NWG
NL = 16
STEPB = 12288
SLOT2 = 0x18000
STAMPS = 0x100000
PLANE = 64 * 208
LDS_S = 2 * PLANE
LDS_BYTES = LDS_S + 512

class A:
    def __init__(self): self.l = []
    def __call__(self, s):
        for x in s.strip("\n").split("\n"):
            x = x.strip()
            if not x: continue
            self.l.append(x if x.endswith(":") or x.startswith(".") else "    " + x)
    def text(self): return "\n".join(self.l) + "\n"

def gen(o):
    a = A()
    ldf = (" " + o.ld) if o.ld else ""
    stf = (" " + o.st) if o.st else ""
    pub = " " + o.pub
    pol = " " + o.pol
    if o.layout == "contig": wgmul, step = PERWG, STEPB
    else: wgmul, step = STEPB, STEPB * NWG
    D0 = 16
    def stamp(i, cond_wave=None):
        if o.stamps: a(f"s_memrealtime s[{60+2*i}:{61+2*i}]")
    def flush_stamps(base_idx, idxs):
        if not o.stamps: return
        a("s_waitcnt lgkmcnt(0)")
        a("s_mov_b64 exec, 1")
        a(f"s_lshl_b32 s59, s2, 8")
        a(f"s_add_u32 s59, s59, {STAMPS}")
        a("v_mov_b32 v2, s59")
        for i in idxs:
            a(f"v_mov_b32 v4, s{60+2*i}")
            a(f"v_mov_b32 v5, s{61+2*i}")
            a(f"buffer_store_dwordx2 v[4:5], v2, s[28:31], 0 offen offset:{(base_idx+i)*8}")
            a("s_nop 1")
    a(f"""
.amdgcn_target "amdgcn-amd-amdhsa--gfx950"
.text
.globl {NAME}
.p2align 8
.type {NAME},@function
{NAME}:
""")
    stamp(0)
    a(f"""
s_load_dwordx2 s[20:21], s[0:1], 0
s_cmp_ge_u32 s2, {NWG}
s_cbranch_scc1 L_end
v_readfirstlane_b32 s3, v0
s_mov_b32 s22, {TOTAL}
s_mov_b32 s23, 0x20000
s_mul_i32 s16, s2, {wgmul}
s_cmp_lt_u32 s3, 64
s_cbranch_scc1 L_ctrl
v_subrev_u32 v1, 64, v0
v_lshl_add_u32 v2, v1, 4, s16
""")
    for k in range(1, NL): a(f"s_mov_b32 s{32+k}, {k*step}")
    a("s_waitcnt lgkmcnt(0)")
    stamp(1)
    def so(k): return "0" if k == 0 else f"s{32+k}"
    for k in range(NL):
        a(f"buffer_load_dwordx4 v[{D0+4*k}:{D0+4*k+3}], v2, s[20:23], {so(k)} offen{ldf}")
    stamp(2)
    a(f"""
s_load_dwordx2 s[24:25], s[0:1], 24
s_load_dwordx2 s[28:29], s[0:1], 40
s_mov_b32 s26, {TOTAL}
s_mov_b32 s27, 0x20000
s_mov_b32 s30, 0x200000
s_mov_b32 s31, 0x20000
s_lshr_b32 s3, s3, 6
s_sub_u32 s3, s3, 1
v_mul_u32_u24 v3, 43691, v1
v_lshrrev_b32 v3, 19, v3
v_mul_u32_u24 v4, 12, v3
v_sub_u32 v4, v1, v4
v_lshlrev_b32 v5, 4, v1
v_lshl_add_u32 v5, v3, 4, v5
v_lshlrev_b32 v6, 5, v4
v_add_u32 v6, {LDS_S}, v6
v_and_b32 v7, 63, v0
v_mul_u32_u24 v3, 208, v7
s_lshl_b32 s17, s3, 4
v_add_u32 v3, s17, v3
v_lshrrev_b32 v7, 3, v7
v_lshlrev_b32 v7, 2, v7
s_lshl_b32 s17, s3, 13
s_lshl_b32 s18, s2, 5
s_add_u32 s17, s17, s18
v_add_u32 v7, s17, v7
""")
    ACC = 8
    T0 = 80
    for k in range(NL):
        a(f"s_waitcnt vmcnt({NL-1-k})")
        for i in range(4):
            d = D0 + 4*k + i
            if k == 0:
                a(f"v_lshlrev_b32 v{ACC+2*i}, 16, v{d}")
                a(f"v_and_b32 v{ACC+2*i+1}, 0xffff0000, v{d}")
            else:
                a(f"v_lshlrev_b32 v{T0+2*i}, 16, v{d}")
                a(f"v_and_b32 v{T0+2*i+1}, 0xffff0000, v{d}")
        if k:
            for i in range(4):
                a(f"v_pk_add_f32 v[{ACC+2*i}:{ACC+2*i+1}], v[{ACC+2*i}:{ACC+2*i+1}], v[{T0+2*i}:{T0+2*i+1}]")
    a(f"""
ds_write_b128 v5, v[8:11]
ds_write_b128 v5, v[12:15] offset:{PLANE}
s_waitcnt lgkmcnt(0)
""")
    stamp(3)
    a(f"""
s_barrier
ds_read_b128 v[8:11], v3
ds_read_b128 v[12:15], v3 offset:{PLANE}
s_waitcnt lgkmcnt(0)
v_permlane32_swap_b32 v8, v12
v_permlane32_swap_b32 v9, v13
v_permlane32_swap_b32 v10, v14
v_permlane32_swap_b32 v11, v15
v_add_f32 v8, v8, v12
v_add_f32 v10, v10, v14
v_add_f32 v9, v9, v13
v_add_f32 v11, v11, v15
s_nop 0
v_permlane16_swap_b32 v8, v10
v_permlane16_swap_b32 v9, v11
v_add_f32 v8, v8, v10
v_add_f32 v9, v9, v11
s_nop 0
v_add_f32_dpp v10, v8, v8 row_ror:8 row_mask:0xf bank_mask:0x3
v_add_f32_dpp v10, v9, v9 row_ror:8 row_mask:0xf bank_mask:0xc
s_nop 1
v_add_f32_dpp v10, v10, v10 row_half_mirror row_mask:0xf bank_mask:0xf
s_nop 1
v_add_f32_dpp v10, v10, v10 quad_perm:[2,3,0,1] row_mask:0xf bank_mask:0xf
s_nop 1
v_add_f32_dpp v10, v10, v10 quad_perm:[1,0,3,2] row_mask:0xf bank_mask:0xf
s_mov_b32 exec_lo, 0x01010101
s_mov_b32 exec_hi, 0x01010101
buffer_store_dword v10, v7, s[28:31], 0 offen{pub}
s_mov_b64 exec, -1
""")
    stamp(4)
    a(f"""
s_barrier
ds_read_b128 v[8:11], v6
ds_read_b128 v[12:15], v6 offset:16
s_waitcnt lgkmcnt(0)
""")
    stamp(5)
    for k in range(NL):
        t = T0 + 8*(k & 1)
        for i in range(4):
            d = D0 + 4*k + i
            a(f"v_lshlrev_b32 v{t+2*i}, 16, v{d}")
            a(f"v_and_b32 v{t+2*i+1}, 0xffff0000, v{d}")
        for i in range(4):
            a(f"v_pk_mul_f32 v[{t+2*i}:{t+2*i+1}], v[{t+2*i}:{t+2*i+1}], v[{ACC+2*i}:{ACC+2*i+1}]")
        for i in range(4):
            d = D0 + 4*k + i
            a(f"v_cvt_pk_bf16_f32 v{d}, v{t+2*i}, v{t+2*i+1}")
        a(f"buffer_store_dwordx4 v[{D0+4*k}:{D0+4*k+3}], v2, s[24:27], {so(k)} offen{stf}")
    if o.stamps:
        stamp(6)
        a("s_waitcnt vmcnt(0)")
        stamp(7)
        a("s_cmp_lg_u32 s3, 0")
        a("s_cbranch_scc1 L_end")
        flush_stamps(0, range(8))
    a("""
L_end:
s_endpgm
""")
    a(f"""
L_ctrl:
s_setprio 3
s_load_dwordx2 s[4:5], s[0:1], 8
s_load_dwordx2 s[8:9], s[0:1], 16
s_load_dwordx2 s[12:13], s[0:1], 32
s_load_dwordx2 s[28:29], s[0:1], 40
s_mov_b32 s6, 1152
s_mov_b32 s7, 0x20000
s_mov_b32 s10, 1152
s_mov_b32 s11, 0x20000
s_mov_b32 s14, 48
s_mov_b32 s15, 0x20000
s_mov_b32 s30, 0x200000
s_mov_b32 s31, 0x20000
v_lshlrev_b32 v1, 2, v0
v_lshlrev_b32 v2, 4, v0
s_lshl_b32 s16, s2, 13
v_add_u32 v2, s16, v2
v_mov_b32 v16, -1
v_mov_b32 v17, -1
v_mov_b32 v18, -1
v_mov_b32 v19, -1
s_lshl_b32 s17, s2, 5
s_add_u32 s17, s17, {SLOT2}
v_lshrrev_b32 v3, 1, v0
v_and_b32 v3, 7, v3
v_lshl_add_u32 v4, v3, 2, s17
v_and_b32 v5, 1, v0
v_lshlrev_b32 v5, 2, v5
v_lshrrev_b32 v6, 4, v0
v_add_u32 v5, v5, v6
s_lshl_b32 s18, s2, 3
v_add_u32 v5, s18, v5
v_mul_u32_u24 v5, 6, v5
v_add_u32 v5, v5, v3
v_lshlrev_b32 v5, 1, v5
v_cmp_gt_u32 vcc, 6, v3
v_mov_b32 v6, 0x10000
s_nop 0
v_cndmask_b32 v5, v6, v5, vcc
v_add_u32 v7, {SLOT2}, v1
v_mov_b32 v9, 0x7fffffc0
v_cmp_gt_u32 vcc, 32, v0
v_add_u32 v8, 256, v7
s_nop 0
v_cndmask_b32 v8, v9, v8, vcc
v_lshlrev_b32 v9, 3, v0
v_add_u32 v9, {LDS_S}, v9
s_mov_b32 s19, {o.spin}
s_movk_i32 s34, 0x1000
s_waitcnt lgkmcnt(0)
""")
    stamp(1)
    a(f"""
s_cmp_ge_u32 s2, 12
s_cbranch_scc1 L_noinit
""")
    for i in range(8):
        a(f"buffer_store_dwordx4 v[16:19], v2, s[28:31], {'0' if i < 4 else 's34'} offen offset:{(i&3)*1024}{pub}")
    a(f"""
buffer_store_dword v16, v4, s[28:31], 0 offen{pub}
buffer_load_ushort v10, v5, s[4:7], 0 offen
s_lshl_b32 s18, s2, 2
v_mov_b32 v11, s18
v_mov_b32 v12, 1
s_waitcnt vmcnt(0)
v_lshlrev_b32 v10, 16, v10
s_mov_b64 exec, 1
buffer_store_dword v12, v11, s[12:15], 0 offen{pub}
s_mov_b64 exec, -1
L_noinit:
""")
    for j in range(6):
        a(f"buffer_load_dword v{52+2*j}, v1, s[8:11], 0 offen offset:{j*192}")
    a(f"""
v_cmp_gt_u32 s[36:37], 12, v0
L_flagpoll:
buffer_load_dword v12, v1, s[12:15], 0 offen{pol}
s_sub_u32 s19, s19, 1
s_cmp_lt_i32 s19, 0
s_cbranch_scc1 L_flagdone
s_waitcnt vmcnt(0)
v_cmp_eq_u32 vcc, 0, v12
s_and_b64 vcc, vcc, s[36:37]
s_cbranch_vccnz L_flagpoll
L_flagdone:
s_waitcnt vmcnt(0)
""")
    for j in range(6):
        a(f"v_and_b32 v{53+2*j}, 0xffff0000, v{52+2*j}")
        a(f"v_lshlrev_b32 v{52+2*j}, 16, v{52+2*j}")
    stamp(2)
    a(f"""
s_barrier
""")
    stamp(3)
    a(f"""
s_cmp_ge_u32 s2, 12
s_cbranch_scc1 L_poll2
L_gather:
""")
    for i in range(8):
        a(f"buffer_load_dwordx4 v[{16+4*i}:{19+4*i}], v2, s[28:31], {'0' if i < 4 else 's34'} offen offset:{(i&3)*1024}{pol}")
    a(f"""
s_sub_u32 s19, s19, 1
s_cmp_lt_i32 s19, 0
s_cbranch_scc1 L_gdone
""")
    for i in range(8):
        b = 16 + 4*i
        a(f"s_waitcnt vmcnt({7-i})")
        if i == 0:
            a(f"v_max3_u32 v12, v{b}, v{b+1}, v{b+2}")
            a(f"v_max_u32 v12, v12, v{b+3}")
        else:
            a(f"v_max3_u32 v12, v12, v{b}, v{b+1}")
            a(f"v_max3_u32 v12, v12, v{b+2}, v{b+3}")
            a(f"v_pk_add_f32 v[16:17], v[16:17], v[{b}:{b+1}]")
            a(f"v_pk_add_f32 v[18:19], v[18:19], v[{b+2}:{b+3}]")
    a(f"""
v_cmp_eq_u32 vcc, -1, v12
s_cbranch_vccnz L_gather
L_gdone:
s_waitcnt vmcnt(0)
v_permlane32_swap_b32 v16, v18
v_permlane32_swap_b32 v17, v19
v_add_f32 v16, v16, v18
v_add_f32 v17, v17, v19
s_nop 1
v_permlane16_swap_b32 v16, v17
v_add_f32 v16, v16, v17
s_nop 1
v_add_f32_dpp v16, v16, v16 row_ror:8 row_mask:0xf bank_mask:0xf
s_nop 1
v_add_f32_dpp v16, v16, v16 row_ror:4 row_mask:0xf bank_mask:0xf
s_nop 1
v_add_f32_dpp v16, v16, v16 row_ror:2 row_mask:0xf bank_mask:0xf
v_mul_f32 v16, 0x36800000, v16
v_cvt_pk_bf16_f32 v16, v16, v16
v_lshlrev_b32 v16, 16, v16
v_mul_f32 v16, v16, v10
s_nop 1
v_add_f32_dpp v16, v16, v16 quad_perm:[1,0,3,2] row_mask:0xf bank_mask:0xf
v_mov_b32 v17, v16
s_nop 1
v_permlane16_swap_b32 v16, v17
v_add_f32 v16, v16, v17
v_mov_b32 v17, v16
s_nop 1
v_permlane32_swap_b32 v16, v17
v_add_f32 v16, v16, v17
s_mov_b64 exec, 0x5555
buffer_store_dword v16, v4, s[28:31], 0 offen{pub}
s_mov_b64 exec, -1
""")
    stamp(4)
    a(f"""
L_poll2:
buffer_load_dword v16, v7, s[28:31], 0 offen{pol}
buffer_load_dword v17, v8, s[28:31], 0 offen{pol}
s_sub_u32 s19, s19, 1
s_cmp_lt_i32 s19, 0
s_cbranch_scc1 L_p2done
s_waitcnt vmcnt(0)
v_max_u32 v12, v16, v17
v_cmp_eq_u32 vcc, -1, v12
s_cbranch_vccnz L_poll2
L_p2done:
s_waitcnt vmcnt(0)
""")
    stamp(5)
    a(f"""
v_add_f32 v16, v16, v17
s_nop 1
v_add_f32_dpp v16, v16, v16 row_ror:8 row_mask:0xf bank_mask:0xf
v_mov_b32 v17, v16
s_nop 1
v_permlane16_swap_b32 v16, v17
v_add_f32 v16, v16, v17
v_mov_b32 v17, v16
s_nop 1
v_permlane32_swap_b32 v16, v17
v_add_f32 v16, v16, v17
v_cvt_pk_bf16_f32 v16, v16, v16
v_lshlrev_b32 v16, 16, v16
v_mul_f32 v17, 0xbfb8aa3b, v16
v_exp_f32 v17, v17
s_nop 0
v_add_f32 v17, 1.0, v17
v_rcp_f32 v17, v17
s_nop 0
v_mul_f32 v16, v16, v17
v_cvt_pk_bf16_f32 v16, v16, v16
v_lshlrev_b32 v16, 16, v16
s_nop 1
v_mul_f32_dpp v18, v16, v52 row_newbcast:0 row_mask:0xf bank_mask:0xf
v_mul_f32_dpp v19, v16, v53 row_newbcast:0 row_mask:0xf bank_mask:0xf
""")
    for j in range(1, 6):
        a(f"v_fmac_f32_dpp v18, v16, v{52+2*j} row_newbcast:{j} row_mask:0xf bank_mask:0xf")
        a(f"v_fmac_f32_dpp v19, v16, v{53+2*j} row_newbcast:{j} row_mask:0xf bank_mask:0xf")
    a(f"""
v_cvt_pk_bf16_f32 v18, v18, v19
v_and_b32 v19, 0xffff0000, v18
v_lshlrev_b32 v18, 16, v18
v_mul_f32 v19, 0xbfb8aa3b, v19
v_mul_f32 v18, 0xbfb8aa3b, v18
v_exp_f32 v19, v19
v_exp_f32 v18, v18
v_add_f32 v19, 1.0, v19
v_add_f32 v18, 1.0, v18
v_rcp_f32 v19, v19
v_rcp_f32 v18, v18
s_nop 0
v_cvt_pk_bf16_f32 v18, v18, v19
v_and_b32 v19, 0xffff0000, v18
v_lshlrev_b32 v18, 16, v18
ds_write_b64 v9, v[18:19]
s_waitcnt lgkmcnt(0)
""")
    stamp(6)
    a("s_barrier")
    if o.stamps:
        a("s_getreg_b32 s74, hwreg(HW_REG_HW_ID)")
        a("s_getreg_b32 s75, hwreg(HW_REG_XCC_ID)")
        flush_stamps(8, range(8))
    a(f"""
s_endpgm
.section .rodata,"a"
.p2align 6
.amdhsa_kernel {NAME}
.amdhsa_next_free_vgpr 96
.amdhsa_next_free_sgpr 96
.amdhsa_accum_offset 96
.amdhsa_group_segment_fixed_size 0
.amdhsa_kernarg_size 48
.amdhsa_user_sgpr_count 2
.amdhsa_user_sgpr_kernarg_segment_ptr 1
.amdhsa_system_sgpr_workgroup_id_x 1
.amdhsa_float_denorm_mode_32 3
.end_amdhsa_kernel
""")
    return HEADER + f"; @launch grid=({NWG},1,1) block=(832,1,1) lds={LDS_BYTES}\n" + a.text()

if __name__ == "__main__":
    p = argparse.ArgumentParser()
    p.add_argument("-o", default="-")
    p.add_argument("--ld", default="")
    p.add_argument("--st", default="")
    p.add_argument("--pub", default="sc1")
    p.add_argument("--pol", default="sc1")
    p.add_argument("--layout", default="contig")
    p.add_argument("--spin", type=int, default=400000)
    p.add_argument("--stamps", action="store_true")
    o = p.parse_args()
    t = gen(o)
    if o.o == "-": sys.stdout.write(t)
    else: open(o.o, "w").write(t)
```

```python
import sys, argparse

HEADER = """; Kernarg layout for this problem (48 bytes, ptrs only, base s[0:1]):
"""
NAME = "standalone__se_block__vision_kernel"
TOTAL = 50331648
NWG = 256
PERWG = TOTAL // NWG
NL = 16
STEPB = 12288
SLOT2 = 0x18000
STAMPS = 0x100000
PLANE = 64 * 208
LDS_S = 2 * PLANE
LDS_BYTES = LDS_S + 512

class A:
    def __init__(self): self.l = []
    def __call__(self, s):
        for x in s.strip("\n").split("\n"):
            x = x.strip()
            if not x: continue
            self.l.append(x if x.endswith(":") or x.startswith(".") else "    " + x)
    def text(self): return "\n".join(self.l) + "\n"

def gen(o):
    a = A()
    ldf = (" " + o.ld) if o.ld else ""
    stf = (" " + o.st) if o.st else ""
    pub = " " + o.pub
    pol = " " + o.pol
    if o.layout == "contig": wgmul, step = PERWG, STEPB
    else: wgmul, step = STEPB, STEPB * NWG
    D0 = 16
    def stamp(i, cond_wave=None):
        if o.stamps or o.diag: a(f"s_memrealtime s[{60+2*i}:{61+2*i}]")
    def flush_stamps(base_idx, idxs):
        if not o.stamps: return
        a("s_waitcnt lgkmcnt(0)")
        a("s_mov_b64 exec, 1")
        a(f"s_lshl_b32 s59, s2, 10")
        a(f"s_add_u32 s59, s59, {STAMPS}")
        if base_idx == 0:
            a("s_lshl_b32 s58, s3, 6")
            a("s_add_u32 s59, s59, s58")
            a("s_add_u32 s59, s59, 64")
        base_idx = 0
        a("v_mov_b32 v2, s59")
        for i in idxs:
            a(f"v_mov_b32 v4, s{60+2*i}")
            a(f"v_mov_b32 v5, s{61+2*i}")
            a(f"buffer_store_dwordx2 v[4:5], v2, s[28:31], 0 offen offset:{(base_idx+i)*8}")
            a("s_nop 1")
    a(f"""
.amdgcn_target "amdgcn-amd-amdhsa--gfx950"
.text
.globl {NAME}
.p2align 8
.type {NAME},@function
{NAME}:
""")
    stamp(0)
    a(f"""
s_load_dwordx2 s[20:21], s[0:1], 0
s_cmp_ge_u32 s2, {NWG}
s_cbranch_scc1 L_end
v_readfirstlane_b32 s3, v0
s_mov_b32 s22, {TOTAL}
s_mov_b32 s23, 0x20000
s_mul_i32 s16, s2, {wgmul}
s_cmp_lt_u32 s3, 64
s_cbranch_scc1 L_ctrl
v_subrev_u32 v1, 64, v0
v_lshl_add_u32 v2, v1, 4, s16
""")
    for k in range(1, NL): a(f"s_mov_b32 s{32+k}, {k*step}")
    a("s_waitcnt lgkmcnt(0)")
    stamp(1)
    def so(k): return "0" if k == 0 else f"s{32+k}"
    for k in range(NL):
        a(f"buffer_load_dwordx4 v[{D0+4*k}:{D0+4*k+3}], v2, s[20:23], {so(k)} offen{ldf}")
    stamp(2)
    a(f"""
s_load_dwordx2 s[24:25], s[0:1], 24
s_load_dwordx2 s[28:29], s[0:1], 40
s_mov_b32 s26, {TOTAL}
s_mov_b32 s27, 0x20000
s_mov_b32 s30, 0x200000
s_mov_b32 s31, 0x20000
s_lshr_b32 s3, s3, 6
s_sub_u32 s3, s3, 1
v_mul_u32_u24 v3, 43691, v1
v_lshrrev_b32 v3, 19, v3
v_mul_u32_u24 v4, 12, v3
v_sub_u32 v4, v1, v4
v_lshlrev_b32 v5, 4, v1
v_lshl_add_u32 v5, v3, 4, v5
v_lshlrev_b32 v6, 5, v4
v_add_u32 v6, {LDS_S}, v6
v_and_b32 v7, 63, v0
v_mul_u32_u24 v3, 208, v7
s_lshl_b32 s17, s3, 4
v_add_u32 v3, s17, v3
v_lshrrev_b32 v7, 3, v7
v_lshlrev_b32 v7, 2, v7
s_lshl_b32 s17, s3, 13
s_lshl_b32 s18, s2, 5
s_add_u32 s17, s17, s18
v_add_u32 v7, s17, v7
""")
    ACC = 8
    T0 = 80
    for k in range(NL):
        a(f"s_waitcnt vmcnt({NL-1-k})")
        for i in range(4):
            d = D0 + 4*k + i
            if k == 0:
                a(f"v_lshlrev_b32 v{ACC+2*i}, 16, v{d}")
                a(f"v_and_b32 v{ACC+2*i+1}, 0xffff0000, v{d}")
            else:
                a(f"v_lshlrev_b32 v{T0+2*i}, 16, v{d}")
                a(f"v_and_b32 v{T0+2*i+1}, 0xffff0000, v{d}")
        if k:
            for i in range(4):
                a(f"v_pk_add_f32 v[{ACC+2*i}:{ACC+2*i+1}], v[{ACC+2*i}:{ACC+2*i+1}], v[{T0+2*i}:{T0+2*i+1}]")
    a(f"""
ds_write_b128 v5, v[8:11]
ds_write_b128 v5, v[12:15] offset:{PLANE}
s_waitcnt lgkmcnt(0)
""")
    stamp(3)
    a(f"""
s_barrier
ds_read_b128 v[8:11], v3
ds_read_b128 v[12:15], v3 offset:{PLANE}
s_waitcnt lgkmcnt(0)
v_permlane32_swap_b32 v8, v12
v_permlane32_swap_b32 v9, v13
v_permlane32_swap_b32 v10, v14
v_permlane32_swap_b32 v11, v15
v_add_f32 v8, v8, v12
v_add_f32 v10, v10, v14
v_add_f32 v9, v9, v13
v_add_f32 v11, v11, v15
s_nop 0
v_permlane16_swap_b32 v8, v10
v_permlane16_swap_b32 v9, v11
v_add_f32 v8, v8, v10
v_add_f32 v9, v9, v11
s_nop 0
v_add_f32_dpp v10, v8, v8 row_ror:8 row_mask:0xf bank_mask:0x3
v_add_f32_dpp v10, v9, v9 row_ror:8 row_mask:0xf bank_mask:0xc
s_nop 1
v_add_f32_dpp v10, v10, v10 row_half_mirror row_mask:0xf bank_mask:0xf
s_nop 1
v_add_f32_dpp v10, v10, v10 quad_perm:[2,3,0,1] row_mask:0xf bank_mask:0xf
s_nop 1
v_add_f32_dpp v10, v10, v10 quad_perm:[1,0,3,2] row_mask:0xf bank_mask:0xf
s_mov_b32 exec_lo, 0x01010101
s_mov_b32 exec_hi, 0x01010101
buffer_store_dword v10, v7, s[28:31], 0 offen{pub}
s_mov_b64 exec, -1
""")
    stamp(4)
    a(f"""
s_barrier
ds_read_b128 v[8:11], v6
ds_read_b128 v[12:15], v6 offset:16
s_waitcnt lgkmcnt(0)
""")
    stamp(5)
    for k in range(NL):
        t = T0 + 8*(k & 1)
        for i in range(4):
            d = D0 + 4*k + i
            a(f"v_lshlrev_b32 v{t+2*i}, 16, v{d}")
            a(f"v_and_b32 v{t+2*i+1}, 0xffff0000, v{d}")
        for i in range(4):
            a(f"v_pk_mul_f32 v[{t+2*i}:{t+2*i+1}], v[{t+2*i}:{t+2*i+1}], v[{ACC+2*i}:{ACC+2*i+1}]")
        for i in range(4):
            d = D0 + 4*k + i
            a(f"v_cvt_pk_bf16_f32 v{d}, v{t+2*i}, v{t+2*i+1}")
        a(f"buffer_store_dwordx4 v[{D0+4*k}:{D0+4*k+3}], v2, s[24:27], {so(k)} offen{stf}")
    if o.stamps:
        stamp(6)
        a("s_waitcnt vmcnt(0)")
        stamp(7)
        flush_stamps(0, range(8))
    if o.diag:
        i, j, K = map(int, o.diag.split(","))
        stamp(6)
        a("s_waitcnt vmcnt(0)")
        stamp(7)
        a(f"""
s_waitcnt lgkmcnt(0)
s_sub_u32 s58, s{60+2*j}, s{60+2*i}
s_mul_i32 s58, s58, {K}
s_add_u32 s58, s58, {o.diagc}
s_min_u32 s58, s58, 100000
L_spin:
s_memrealtime s[56:57]
s_waitcnt lgkmcnt(0)
s_sub_u32 s56, s56, s74
s_cmp_lt_u32 s56, s58
s_cbranch_scc1 L_spin
""")
    a("""
L_end:
s_endpgm
""")
    a(f"""
L_ctrl:
s_setprio 3
s_load_dwordx2 s[4:5], s[0:1], 8
s_load_dwordx2 s[8:9], s[0:1], 16
s_load_dwordx2 s[12:13], s[0:1], 32
s_load_dwordx2 s[28:29], s[0:1], 40
s_mov_b32 s6, 1152
s_mov_b32 s7, 0x20000
s_mov_b32 s10, 1152
s_mov_b32 s11, 0x20000
s_mov_b32 s14, 48
s_mov_b32 s15, 0x20000
s_mov_b32 s30, 0x200000
s_mov_b32 s31, 0x20000
v_lshlrev_b32 v1, 2, v0
v_lshlrev_b32 v2, 4, v0
s_lshl_b32 s16, s2, 13
v_add_u32 v2, s16, v2
v_mov_b32 v16, -1
v_mov_b32 v17, -1
v_mov_b32 v18, -1
v_mov_b32 v19, -1
s_lshl_b32 s17, s2, 5
s_add_u32 s17, s17, {SLOT2}
v_lshrrev_b32 v3, 1, v0
v_and_b32 v3, 7, v3
v_lshl_add_u32 v4, v3, 2, s17
v_and_b32 v5, 1, v0
v_lshlrev_b32 v5, 2, v5
v_lshrrev_b32 v6, 4, v0
v_add_u32 v5, v5, v6
s_lshl_b32 s18, s2, 3
v_add_u32 v5, s18, v5
v_mul_u32_u24 v5, 6, v5
v_add_u32 v5, v5, v3
v_lshlrev_b32 v5, 1, v5
v_cmp_gt_u32 vcc, 6, v3
v_mov_b32 v6, 0x10000
s_nop 0
v_cndmask_b32 v5, v6, v5, vcc
v_add_u32 v7, {SLOT2}, v1
v_mov_b32 v9, 0x7fffffc0
v_cmp_gt_u32 vcc, 32, v0
v_add_u32 v8, 256, v7
s_nop 0
v_cndmask_b32 v8, v9, v8, vcc
v_lshlrev_b32 v9, 3, v0
v_add_u32 v9, {LDS_S}, v9
s_mov_b32 s19, {o.spin}
s_movk_i32 s34, 0x1000
s_waitcnt lgkmcnt(0)
""")
    stamp(1)
    a(f"""
s_cmp_ge_u32 s2, 12
s_cbranch_scc1 L_noinit
""")
    for i in range(8):
        a(f"buffer_store_dwordx4 v[16:19], v2, s[28:31], {'0' if i < 4 else 's34'} offen offset:{(i&3)*1024}{pub}")
    a(f"""
buffer_store_dword v16, v4, s[28:31], 0 offen{pub}
buffer_load_ushort v10, v5, s[4:7], 0 offen
s_lshl_b32 s18, s2, 2
v_mov_b32 v11, s18
v_mov_b32 v12, 1
s_waitcnt vmcnt(0)
v_lshlrev_b32 v10, 16, v10
s_mov_b64 exec, 1
buffer_store_dword v12, v11, s[12:15], 0 offen{pub}
s_mov_b64 exec, -1
L_noinit:
""")
    for j in range(6):
        a(f"buffer_load_dword v{52+2*j}, v1, s[8:11], 0 offen offset:{j*192}")
    a(f"""
v_cmp_gt_u32 s[36:37], 12, v0
L_flagpoll:
buffer_load_dword v12, v1, s[12:15], 0 offen{pol}
s_sub_u32 s19, s19, 1
s_cmp_lt_i32 s19, 0
s_cbranch_scc1 L_flagdone
s_waitcnt vmcnt(0)
v_cmp_eq_u32 vcc, 0, v12
s_and_b64 vcc, vcc, s[36:37]
s_cbranch_vccnz L_flagpoll
L_flagdone:
s_waitcnt vmcnt(0)
""")
    for j in range(6):
        a(f"v_and_b32 v{53+2*j}, 0xffff0000, v{52+2*j}")
        a(f"v_lshlrev_b32 v{52+2*j}, 16, v{52+2*j}")
    stamp(2)
    a(f"""
s_barrier
""")
    stamp(3)
    a(f"""
s_cmp_ge_u32 s2, 12
s_cbranch_scc1 L_poll2
L_gather:
""")
    for i in range(8):
        a(f"buffer_load_dwordx4 v[{16+4*i}:{19+4*i}], v2, s[28:31], {'0' if i < 4 else 's34'} offen offset:{(i&3)*1024}{pol}")
    a(f"""
s_sub_u32 s19, s19, 1
s_cmp_lt_i32 s19, 0
s_cbranch_scc1 L_gdone
""")
    for i in range(8):
        b = 16 + 4*i
        a(f"s_waitcnt vmcnt({7-i})")
        if i == 0:
            a(f"v_max3_u32 v12, v{b}, v{b+1}, v{b+2}")
            a(f"v_max_u32 v12, v12, v{b+3}")
        else:
            a(f"v_max3_u32 v12, v12, v{b}, v{b+1}")
            a(f"v_max3_u32 v12, v12, v{b+2}, v{b+3}")
            a(f"v_pk_add_f32 v[16:17], v[16:17], v[{b}:{b+1}]")
            a(f"v_pk_add_f32 v[18:19], v[18:19], v[{b+2}:{b+3}]")
    a(f"""
v_cmp_eq_u32 vcc, -1, v12
s_cbranch_vccnz L_gather
L_gdone:
s_waitcnt vmcnt(0)
v_permlane32_swap_b32 v16, v18
v_permlane32_swap_b32 v17, v19
v_add_f32 v16, v16, v18
v_add_f32 v17, v17, v19
s_nop 1
v_permlane16_swap_b32 v16, v17
v_add_f32 v16, v16, v17
s_nop 1
v_add_f32_dpp v16, v16, v16 row_ror:8 row_mask:0xf bank_mask:0xf
s_nop 1
v_add_f32_dpp v16, v16, v16 row_ror:4 row_mask:0xf bank_mask:0xf
s_nop 1
v_add_f32_dpp v16, v16, v16 row_ror:2 row_mask:0xf bank_mask:0xf
v_mul_f32 v16, 0x36800000, v16
v_cvt_pk_bf16_f32 v16, v16, v16
v_lshlrev_b32 v16, 16, v16
v_mul_f32 v16, v16, v10
s_nop 1
v_add_f32_dpp v16, v16, v16 quad_perm:[1,0,3,2] row_mask:0xf bank_mask:0xf
v_mov_b32 v17, v16
s_nop 1
v_permlane16_swap_b32 v16, v17
v_add_f32 v16, v16, v17
v_mov_b32 v17, v16
s_nop 1
v_permlane32_swap_b32 v16, v17
v_add_f32 v16, v16, v17
s_mov_b64 exec, 0x5555
buffer_store_dword v16, v4, s[28:31], 0 offen{pub}
s_mov_b64 exec, -1
""")
    stamp(4)
    a(f"""
L_poll2:
buffer_load_dword v16, v7, s[28:31], 0 offen{pol}
buffer_load_dword v17, v8, s[28:31], 0 offen{pol}
s_sub_u32 s19, s19, 1
s_cmp_lt_i32 s19, 0
s_cbranch_scc1 L_p2done
s_waitcnt vmcnt(0)
v_max_u32 v12, v16, v17
v_cmp_eq_u32 vcc, -1, v12
s_cbranch_vccnz L_poll2
L_p2done:
s_waitcnt vmcnt(0)
""")
    stamp(5)
    a(f"""
v_add_f32 v16, v16, v17
s_nop 1
v_add_f32_dpp v16, v16, v16 row_ror:8 row_mask:0xf bank_mask:0xf
v_mov_b32 v17, v16
s_nop 1
v_permlane16_swap_b32 v16, v17
v_add_f32 v16, v16, v17
v_mov_b32 v17, v16
s_nop 1
v_permlane32_swap_b32 v16, v17
v_add_f32 v16, v16, v17
v_cvt_pk_bf16_f32 v16, v16, v16
v_lshlrev_b32 v16, 16, v16
v_mul_f32 v17, 0xbfb8aa3b, v16
v_exp_f32 v17, v17
s_nop 0
v_add_f32 v17, 1.0, v17
v_rcp_f32 v17, v17
s_nop 0
v_mul_f32 v16, v16, v17
v_cvt_pk_bf16_f32 v16, v16, v16
v_lshlrev_b32 v16, 16, v16
s_nop 1
v_mul_f32_dpp v18, v16, v52 row_newbcast:0 row_mask:0xf bank_mask:0xf
v_mul_f32_dpp v19, v16, v53 row_newbcast:0 row_mask:0xf bank_mask:0xf
""")
    for j in range(1, 6):
        a(f"v_fmac_f32_dpp v18, v16, v{52+2*j} row_newbcast:{j} row_mask:0xf bank_mask:0xf")
        a(f"v_fmac_f32_dpp v19, v16, v{53+2*j} row_newbcast:{j} row_mask:0xf bank_mask:0xf")
    a(f"""
v_cvt_pk_bf16_f32 v18, v18, v19
v_and_b32 v19, 0xffff0000, v18
v_lshlrev_b32 v18, 16, v18
v_mul_f32 v19, 0xbfb8aa3b, v19
v_mul_f32 v18, 0xbfb8aa3b, v18
v_exp_f32 v19, v19
v_exp_f32 v18, v18
v_add_f32 v19, 1.0, v19
v_add_f32 v18, 1.0, v18
v_rcp_f32 v19, v19
v_rcp_f32 v18, v18
s_nop 0
v_cvt_pk_bf16_f32 v18, v18, v19
v_and_b32 v19, 0xffff0000, v18
v_lshlrev_b32 v18, 16, v18
ds_write_b64 v9, v[18:19]
s_waitcnt lgkmcnt(0)
""")
    stamp(6)
    a("s_barrier")
    if o.stamps:
        a("s_getreg_b32 s74, hwreg(HW_REG_HW_ID)")
        a("s_getreg_b32 s75, hwreg(HW_REG_XCC_ID)")
        flush_stamps(8, range(8))
    a(f"""
s_endpgm
.section .rodata,"a"
.p2align 6
.amdhsa_kernel {NAME}
.amdhsa_next_free_vgpr 96
.amdhsa_next_free_sgpr 96
.amdhsa_accum_offset 96
.amdhsa_group_segment_fixed_size 0
.amdhsa_kernarg_size 48
.amdhsa_user_sgpr_count 2
.amdhsa_user_sgpr_kernarg_segment_ptr 1
.amdhsa_system_sgpr_workgroup_id_x 1
.amdhsa_float_denorm_mode_32 3
.end_amdhsa_kernel
""")
    return HEADER + f"; @launch grid=({NWG},1,1) block=(832,1,1) lds={LDS_BYTES}\n" + a.text()

if __name__ == "__main__":
    p = argparse.ArgumentParser()
    p.add_argument("-o", default="-")
    p.add_argument("--ld", default="")
    p.add_argument("--st", default="")
    p.add_argument("--pub", default="sc1")
    p.add_argument("--pol", default="sc1")
    p.add_argument("--layout", default="contig")
    p.add_argument("--spin", type=int, default=400000)
    p.add_argument("--stamps", action="store_true")
    p.add_argument("--diag", default="")
    p.add_argument("--diagc", type=int, default=0)
    o = p.parse_args()
    t = gen(o)
    if o.o == "-": sys.stdout.write(t)
    else: open(o.o, "w").write(t)
```

```python
import sys, argparse

HEADER = """; Kernarg layout for this problem (48 bytes, ptrs only, base s[0:1]):
"""
NAME = "standalone__se_block__vision_kernel"
TOTAL = 50331648
NWG = 256
PERWG = TOTAL // NWG
NL = 16
STEPB = 12288
SLOT2 = 0x18000
STAMPS = 0x100000
PLANE = 64 * 208
LDS_S = 2 * PLANE
LDS_BYTES = LDS_S + 512

class A:
    def __init__(self): self.l = []
    def __call__(self, s):
        for x in s.strip("\n").split("\n"):
            x = x.strip()
            if not x: continue
            self.l.append(x if x.endswith(":") or x.startswith(".") else "    " + x)
    def text(self): return "\n".join(self.l) + "\n"

def gen(o):
    a = A()
    ldf = (" " + o.ld) if o.ld else ""
    stf = (" " + o.st) if o.st else ""
    pub = " " + o.pub
    pol = " " + o.pol
    K = 1024
    pats = {"p1": (192*K, 3*K, 12*K), "p2": (192*K, 48*K, 3*K), "p3": (12*K, 3*K, 3072*K),
            "p4": (3*K, 16*768*K, 768*K), "p5": (48*K, 12288*K, 3*K),
            "p6": (6*K, 8*1536*K*2, 0), }
    pats["contig"] = pats["p1"]; pats["inter"] = pats["p3"]
    wgmul, qmul, step = pats[o.layout]
    def stk(k):
        if not o.stmix: return stf
        return {"p": "", "n": " nt", "s": " sc1", "t": " sc1 nt", "u": " sc0 sc1", "z": " sc0"}[o.stmix[k % len(o.stmix)]]
    D0 = 16
    def stamp(i, cond_wave=None):
        if o.stamps or o.diag: a(f"s_memrealtime s[{60+2*i}:{61+2*i}]")
    def flush_stamps(base_idx, idxs):
        if not o.stamps: return
        a("s_waitcnt lgkmcnt(0)")
        a("s_mov_b64 exec, 1")
        a(f"s_lshl_b32 s59, s2, 10")
        a(f"s_add_u32 s59, s59, {STAMPS}")
        if base_idx == 0:
            a("s_lshl_b32 s58, s3, 6")
            a("s_add_u32 s59, s59, s58")
            a("s_add_u32 s59, s59, 64")
        base_idx = 0
        a("v_mov_b32 v2, s59")
        for i in idxs:
            a(f"v_mov_b32 v4, s{60+2*i}")
            a(f"v_mov_b32 v5, s{61+2*i}")
            a(f"buffer_store_dwordx2 v[4:5], v2, s[28:31], 0 offen offset:{(base_idx+i)*8}")
            a("s_nop 1")
    a(f"""
.amdgcn_target "amdgcn-amd-amdhsa--gfx950"
.text
.globl {NAME}
.p2align 8
.type {NAME},@function
{NAME}:
""")
    stamp(0)
    a(f"""
s_load_dwordx2 s[20:21], s[0:1], 0
s_cmp_ge_u32 s2, {NWG}
s_cbranch_scc1 L_end
v_readfirstlane_b32 s3, v0
s_mov_b32 s22, {TOTAL}
s_mov_b32 s23, 0x20000
s_mul_i32 s16, s2, {wgmul}
s_cmp_lt_u32 s3, 64
s_cbranch_scc1 L_ctrl
v_subrev_u32 v1, 64, v0
""")
    if qmul != 3072:
        a(f"""
s_lshr_b32 s17, s3, 6
s_sub_u32 s17, s17, 1
s_mul_i32 s17, s17, 43
s_lshr_b32 s17, s17, 7
s_mul_i32 s17, s17, {qmul-3072}
s_add_u32 s16, s16, s17
""")
    a("v_lshl_add_u32 v2, v1, 4, s16")
    for k in range(1, NL): a(f"s_mov_b32 s{32+k}, {k*step}")
    a("s_waitcnt lgkmcnt(0)")
    stamp(1)
    def so(k): return "0" if k == 0 else f"s{32+k}"
    for k in range(NL):
        a(f"buffer_load_dwordx4 v[{D0+4*k}:{D0+4*k+3}], v2, s[20:23], {so(k)} offen{ldf}")
    stamp(2)
    a(f"""
s_load_dwordx2 s[24:25], s[0:1], 24
s_load_dwordx2 s[28:29], s[0:1], 40
s_mov_b32 s26, {TOTAL}
s_mov_b32 s27, 0x20000
s_mov_b32 s30, 0x200000
s_mov_b32 s31, 0x20000
s_lshr_b32 s3, s3, 6
s_sub_u32 s3, s3, 1
v_mul_u32_u24 v3, 43691, v1
v_lshrrev_b32 v3, 19, v3
v_mul_u32_u24 v4, 12, v3
v_sub_u32 v4, v1, v4
v_lshlrev_b32 v5, 4, v1
v_lshl_add_u32 v5, v3, 4, v5
v_lshlrev_b32 v6, 5, v4
v_add_u32 v6, {LDS_S}, v6
v_and_b32 v7, 63, v0
v_mul_u32_u24 v3, 208, v7
s_lshl_b32 s17, s3, 4
v_add_u32 v3, s17, v3
v_lshrrev_b32 v7, 3, v7
v_lshlrev_b32 v7, 2, v7
s_lshl_b32 s17, s3, 13
s_lshl_b32 s18, s2, 5
s_add_u32 s17, s17, s18
v_add_u32 v7, s17, v7
""")
    ACC = 8
    T0 = 80
    for k in range(NL):
        a(f"s_waitcnt vmcnt({NL-1-k})")
        for i in range(4):
            d = D0 + 4*k + i
            if k == 0:
                a(f"v_lshlrev_b32 v{ACC+2*i}, 16, v{d}")
                a(f"v_and_b32 v{ACC+2*i+1}, 0xffff0000, v{d}")
            else:
                a(f"v_lshlrev_b32 v{T0+2*i}, 16, v{d}")
                a(f"v_and_b32 v{T0+2*i+1}, 0xffff0000, v{d}")
        if k:
            for i in range(4):
                a(f"v_pk_add_f32 v[{ACC+2*i}:{ACC+2*i+1}], v[{ACC+2*i}:{ACC+2*i+1}], v[{T0+2*i}:{T0+2*i+1}]")
    a(f"""
ds_write_b128 v5, v[8:11]
ds_write_b128 v5, v[12:15] offset:{PLANE}
s_waitcnt lgkmcnt(0)
""")
    stamp(3)
    a(f"""
s_barrier
ds_read_b128 v[8:11], v3
ds_read_b128 v[12:15], v3 offset:{PLANE}
s_waitcnt lgkmcnt(0)
v_permlane32_swap_b32 v8, v12
v_permlane32_swap_b32 v9, v13
v_permlane32_swap_b32 v10, v14
v_permlane32_swap_b32 v11, v15
v_add_f32 v8, v8, v12
v_add_f32 v10, v10, v14
v_add_f32 v9, v9, v13
v_add_f32 v11, v11, v15
s_nop 0
v_permlane16_swap_b32 v8, v10
v_permlane16_swap_b32 v9, v11
v_add_f32 v8, v8, v10
v_add_f32 v9, v9, v11
s_nop 0
v_add_f32_dpp v10, v8, v8 row_ror:8 row_mask:0xf bank_mask:0x3
v_add_f32_dpp v10, v9, v9 row_ror:8 row_mask:0xf bank_mask:0xc
s_nop 1
v_add_f32_dpp v10, v10, v10 row_half_mirror row_mask:0xf bank_mask:0xf
s_nop 1
v_add_f32_dpp v10, v10, v10 quad_perm:[2,3,0,1] row_mask:0xf bank_mask:0xf
s_nop 1
v_add_f32_dpp v10, v10, v10 quad_perm:[1,0,3,2] row_mask:0xf bank_mask:0xf
s_mov_b32 exec_lo, 0x01010101
s_mov_b32 exec_hi, 0x01010101
buffer_store_dword v10, v7, s[28:31], 0 offen{pub}
s_mov_b64 exec, -1
""")
    stamp(4)
    a(f"""
s_barrier
ds_read_b128 v[8:11], v6
ds_read_b128 v[12:15], v6 offset:16
s_waitcnt lgkmcnt(0)
""")
    stamp(5)
    for k in range(NL):
        t = T0 + 8*(k & 1)
        for i in range(4):
            d = D0 + 4*k + i
            a(f"v_lshlrev_b32 v{t+2*i}, 16, v{d}")
            a(f"v_and_b32 v{t+2*i+1}, 0xffff0000, v{d}")
        for i in range(4):
            a(f"v_pk_mul_f32 v[{t+2*i}:{t+2*i+1}], v[{t+2*i}:{t+2*i+1}], v[{ACC+2*i}:{ACC+2*i+1}]")
        for i in range(4):
            d = D0 + 4*k + i
            a(f"v_cvt_pk_bf16_f32 v{d}, v{t+2*i}, v{t+2*i+1}")
        a(f"buffer_store_dwordx4 v[{D0+4*k}:{D0+4*k+3}], v2, s[24:27], {so(k)} offen{stk(k)}")
    if o.stamps:
        stamp(6)
        a("s_waitcnt vmcnt(0)")
        stamp(7)
        flush_stamps(0, range(8))
    if o.diag:
        i, j, K = map(int, o.diag.split(","))
        stamp(6)
        a("s_waitcnt vmcnt(0)")
        stamp(7)
        a(f"""
s_waitcnt lgkmcnt(0)
s_sub_u32 s58, s{60+2*j}, s{60+2*i}
s_mul_i32 s58, s58, {K}
s_add_u32 s58, s58, {o.diagc}
s_min_u32 s58, s58, 100000
L_spin:
s_memrealtime s[56:57]
s_waitcnt lgkmcnt(0)
s_sub_u32 s56, s56, s74
s_cmp_lt_u32 s56, s58
s_cbranch_scc1 L_spin
""")
    a("""
L_end:
s_endpgm
""")
    a(f"""
L_ctrl:
s_setprio 3
s_load_dwordx2 s[4:5], s[0:1], 8
s_load_dwordx2 s[8:9], s[0:1], 16
s_load_dwordx2 s[12:13], s[0:1], 32
s_load_dwordx2 s[28:29], s[0:1], 40
s_mov_b32 s6, 1152
s_mov_b32 s7, 0x20000
s_mov_b32 s10, 1152
s_mov_b32 s11, 0x20000
s_mov_b32 s14, 48
s_mov_b32 s15, 0x20000
s_mov_b32 s30, 0x200000
s_mov_b32 s31, 0x20000
v_lshlrev_b32 v1, 2, v0
v_lshlrev_b32 v2, 4, v0
s_lshl_b32 s16, s2, 13
v_add_u32 v2, s16, v2
v_mov_b32 v16, -1
v_mov_b32 v17, -1
v_mov_b32 v18, -1
v_mov_b32 v19, -1
s_lshl_b32 s17, s2, 5
s_add_u32 s17, s17, {SLOT2}
v_lshrrev_b32 v3, 1, v0
v_and_b32 v3, 7, v3
v_lshl_add_u32 v4, v3, 2, s17
v_and_b32 v5, 1, v0
v_lshlrev_b32 v5, 2, v5
v_lshrrev_b32 v6, 4, v0
v_add_u32 v5, v5, v6
s_lshl_b32 s18, s2, 3
v_add_u32 v5, s18, v5
v_mul_u32_u24 v5, 6, v5
v_add_u32 v5, v5, v3
v_lshlrev_b32 v5, 1, v5
v_cmp_gt_u32 vcc, 6, v3
v_mov_b32 v6, 0x10000
s_nop 0
v_cndmask_b32 v5, v6, v5, vcc
v_add_u32 v7, {SLOT2}, v1
v_mov_b32 v9, 0x7fffffc0
v_cmp_gt_u32 vcc, 32, v0
v_add_u32 v8, 256, v7
s_nop 0
v_cndmask_b32 v8, v9, v8, vcc
v_lshlrev_b32 v9, 3, v0
v_add_u32 v9, {LDS_S}, v9
s_mov_b32 s19, {o.spin}
s_movk_i32 s34, 0x1000
s_waitcnt lgkmcnt(0)
""")
    stamp(1)
    a(f"""
s_cmp_ge_u32 s2, 12
s_cbranch_scc1 L_noinit
""")
    for i in range(8):
        a(f"buffer_store_dwordx4 v[16:19], v2, s[28:31], {'0' if i < 4 else 's34'} offen offset:{(i&3)*1024}{pub}")
    a(f"""
buffer_store_dword v16, v4, s[28:31], 0 offen{pub}
buffer_load_ushort v10, v5, s[4:7], 0 offen
s_lshl_b32 s18, s2, 2
v_mov_b32 v11, s18
v_mov_b32 v12, 1
s_waitcnt vmcnt(0)
v_lshlrev_b32 v10, 16, v10
s_mov_b64 exec, 1
buffer_store_dword v12, v11, s[12:15], 0 offen{pub}
s_mov_b64 exec, -1
L_noinit:
""")
    for j in range(6):
        a(f"buffer_load_dword v{52+2*j}, v1, s[8:11], 0 offen offset:{j*192}")
    a(f"""
v_cmp_gt_u32 s[36:37], 12, v0
L_flagpoll:
buffer_load_dword v12, v1, s[12:15], 0 offen{pol}
s_sub_u32 s19, s19, 1
s_cmp_lt_i32 s19, 0
s_cbranch_scc1 L_flagdone
s_waitcnt vmcnt(0)
v_cmp_eq_u32 vcc, 0, v12
s_and_b64 vcc, vcc, s[36:37]
s_cbranch_vccnz L_flagpoll
L_flagdone:
s_waitcnt vmcnt(0)
""")
    for j in range(6):
        a(f"v_and_b32 v{53+2*j}, 0xffff0000, v{52+2*j}")
        a(f"v_lshlrev_b32 v{52+2*j}, 16, v{52+2*j}")
    stamp(2)
    a(f"""
s_barrier
""")
    stamp(3)
    a(f"""
s_cmp_ge_u32 s2, 12
s_cbranch_scc1 L_poll2
L_gather:
""")
    for i in range(8):
        a(f"buffer_load_dwordx4 v[{16+4*i}:{19+4*i}], v2, s[28:31], {'0' if i < 4 else 's34'} offen offset:{(i&3)*1024}{pol}")
    a(f"""
s_sub_u32 s19, s19, 1
s_cmp_lt_i32 s19, 0
s_cbranch_scc1 L_gdone
""")
    for i in range(8):
        b = 16 + 4*i
        a(f"s_waitcnt vmcnt({7-i})")
        if i == 0:
            a(f"v_max3_u32 v12, v{b}, v{b+1}, v{b+2}")
            a(f"v_max_u32 v12, v12, v{b+3}")
        else:
            a(f"v_max3_u32 v12, v12, v{b}, v{b+1}")
            a(f"v_max3_u32 v12, v12, v{b+2}, v{b+3}")
            a(f"v_pk_add_f32 v[16:17], v[16:17], v[{b}:{b+1}]")
            a(f"v_pk_add_f32 v[18:19], v[18:19], v[{b+2}:{b+3}]")
    a(f"""
v_cmp_eq_u32 vcc, -1, v12
s_cbranch_vccnz L_gather
L_gdone:
s_waitcnt vmcnt(0)
v_permlane32_swap_b32 v16, v18
v_permlane32_swap_b32 v17, v19
v_add_f32 v16, v16, v18
v_add_f32 v17, v17, v19
s_nop 1
v_permlane16_swap_b32 v16, v17
v_add_f32 v16, v16, v17
s_nop 1
v_add_f32_dpp v16, v16, v16 row_ror:8 row_mask:0xf bank_mask:0xf
s_nop 1
v_add_f32_dpp v16, v16, v16 row_ror:4 row_mask:0xf bank_mask:0xf
s_nop 1
v_add_f32_dpp v16, v16, v16 row_ror:2 row_mask:0xf bank_mask:0xf
v_mul_f32 v16, 0x36800000, v16
v_cvt_pk_bf16_f32 v16, v16, v16
v_lshlrev_b32 v16, 16, v16
v_mul_f32 v16, v16, v10
s_nop 1
v_add_f32_dpp v16, v16, v16 quad_perm:[1,0,3,2] row_mask:0xf bank_mask:0xf
v_mov_b32 v17, v16
s_nop 1
v_permlane16_swap_b32 v16, v17
v_add_f32 v16, v16, v17
v_mov_b32 v17, v16
s_nop 1
v_permlane32_swap_b32 v16, v17
v_add_f32 v16, v16, v17
s_mov_b64 exec, 0x5555
buffer_store_dword v16, v4, s[28:31], 0 offen{pub}
s_mov_b64 exec, -1
""")
    stamp(4)
    a(f"""
L_poll2:
buffer_load_dword v16, v7, s[28:31], 0 offen{pol}
buffer_load_dword v17, v8, s[28:31], 0 offen{pol}
s_sub_u32 s19, s19, 1
s_cmp_lt_i32 s19, 0
s_cbranch_scc1 L_p2done
s_waitcnt vmcnt(0)
v_max_u32 v12, v16, v17
v_cmp_eq_u32 vcc, -1, v12
s_cbranch_vccnz L_poll2
L_p2done:
s_waitcnt vmcnt(0)
""")
    stamp(5)
    a(f"""
v_add_f32 v16, v16, v17
s_nop 1
v_add_f32_dpp v16, v16, v16 row_ror:8 row_mask:0xf bank_mask:0xf
v_mov_b32 v17, v16
s_nop 1
v_permlane16_swap_b32 v16, v17
v_add_f32 v16, v16, v17
v_mov_b32 v17, v16
s_nop 1
v_permlane32_swap_b32 v16, v17
v_add_f32 v16, v16, v17
v_cvt_pk_bf16_f32 v16, v16, v16
v_lshlrev_b32 v16, 16, v16
v_mul_f32 v17, 0xbfb8aa3b, v16
v_exp_f32 v17, v17
s_nop 0
v_add_f32 v17, 1.0, v17
v_rcp_f32 v17, v17
s_nop 0
v_mul_f32 v16, v16, v17
v_cvt_pk_bf16_f32 v16, v16, v16
v_lshlrev_b32 v16, 16, v16
s_nop 1
v_mul_f32_dpp v18, v16, v52 row_newbcast:0 row_mask:0xf bank_mask:0xf
v_mul_f32_dpp v19, v16, v53 row_newbcast:0 row_mask:0xf bank_mask:0xf
""")
    for j in range(1, 6):
        a(f"v_fmac_f32_dpp v18, v16, v{52+2*j} row_newbcast:{j} row_mask:0xf bank_mask:0xf")
        a(f"v_fmac_f32_dpp v19, v16, v{53+2*j} row_newbcast:{j} row_mask:0xf bank_mask:0xf")
    a(f"""
v_cvt_pk_bf16_f32 v18, v18, v19
v_and_b32 v19, 0xffff0000, v18
v_lshlrev_b32 v18, 16, v18
v_mul_f32 v19, 0xbfb8aa3b, v19
v_mul_f32 v18, 0xbfb8aa3b, v18
v_exp_f32 v19, v19
v_exp_f32 v18, v18
v_add_f32 v19, 1.0, v19
v_add_f32 v18, 1.0, v18
v_rcp_f32 v19, v19
v_rcp_f32 v18, v18
s_nop 0
v_cvt_pk_bf16_f32 v18, v18, v19
v_and_b32 v19, 0xffff0000, v18
v_lshlrev_b32 v18, 16, v18
ds_write_b64 v9, v[18:19]
s_waitcnt lgkmcnt(0)
""")
    stamp(6)
    a("s_barrier")
    if o.wbl2:
        nwg, n, d0, d1 = map(int, o.wbl2.split(","))
        a(f"""
s_cmp_ge_u32 s2, {nwg}
s_cbranch_scc1 L_nowb
s_sleep {d0}
""")
        for i in range(n):
            a("buffer_wbl2 sc1")
            a("s_waitcnt vmcnt(0)")
            if i < n-1 and d1: a(f"s_sleep {d1}")
        a("L_nowb:")
    if o.stamps:
        a("s_getreg_b32 s74, hwreg(HW_REG_HW_ID)")
        a("s_getreg_b32 s75, hwreg(HW_REG_XCC_ID)")
        flush_stamps(8, range(8))
    a(f"""
s_endpgm
.section .rodata,"a"
.p2align 6
.amdhsa_kernel {NAME}
.amdhsa_next_free_vgpr 96
.amdhsa_next_free_sgpr 96
.amdhsa_accum_offset 96
.amdhsa_group_segment_fixed_size 0
.amdhsa_kernarg_size 48
.amdhsa_user_sgpr_count 2
.amdhsa_user_sgpr_kernarg_segment_ptr 1
.amdhsa_system_sgpr_workgroup_id_x 1
.amdhsa_float_denorm_mode_32 3
.end_amdhsa_kernel
""")
    return HEADER + f"; @launch grid=({NWG},1,1) block=(832,1,1) lds={LDS_BYTES}\n" + a.text()

if __name__ == "__main__":
    p = argparse.ArgumentParser()
    p.add_argument("-o", default="-")
    p.add_argument("--ld", default="")
    p.add_argument("--st", default="")
    p.add_argument("--pub", default="sc1")
    p.add_argument("--pol", default="sc1")
    p.add_argument("--layout", default="contig")
    p.add_argument("--spin", type=int, default=400000)
    p.add_argument("--stamps", action="store_true")
    p.add_argument("--diag", default="")
    p.add_argument("--stmix", default="")
    p.add_argument("--wbl2", default="")
    p.add_argument("--diagc", type=int, default=0)
    o = p.parse_args()
    t = gen(o)
    if o.o == "-": sys.stdout.write(t)
    else: open(o.o, "w").write(t)
```

```python
import sys, argparse

DESC = """;
;
; One persistent launch, 256 workgroups (one per CU) of 12 data waves + 1 control wave.
;   * every data wave keeps its 16 KiB of x in v16..v79 from the load phase to the store phase,
;   * thread t always holds channels 8*(t%12)..+7, per-lane f32 sums -> LDS -> 96 sums per workgroup;
;   Slots are self-validating: they are set to 0xffffffff first (a counter in d_debug says when), and no
;
"""
HEADER = """; Kernarg layout for this problem (48 bytes, ptrs only, base s[0:1]):
"""
NAME = "standalone__se_block__vision_kernel"
TOTAL = 50331648
NWG = 256
NL = 16
K = 1024
M = 1024 * K
STAMPS = 0x100000
SLOT2 = 0x60000
S2 = 128
CS = 2048
PLANE = 64 * 208 + 128
LDS_S = 2 * PLANE
LDS_I = LDS_S + 512
LDS_BYTES = LDS_I + 64
DPPF = "row_mask:0xf bank_mask:0xf"
NV = 16
V0 = 16

class A:
    def __init__(self): self.l = []
    def __call__(self, s):
        for x in s.strip("\n").split("\n"):
            x = x.strip()
            if not x: continue
            self.l.append(x if x.endswith(":") or x.startswith(".") else "    " + x)
    def text(self): return "\n".join(self.l) + "\n"

def gen(o):
    a = A()
    ldf = (" " + o.ld) if o.ld else ""
    pub = pol = " sc1"
    POL = {"p": "", "n": " nt", "s": " sc1", "t": " sc1 nt", "u": " sc0 sc1", "z": " sc0"}
    def stk(k): return POL[o.stmix[k % len(o.stmix)]]
    def stk2(n, k):
        if not o.pola: return stk(n)
        return POL[o.pola[(k - ND) % len(o.pola)]] if k >= ND else POL[o.pold[k % len(o.pold)]]
    DEP, ND = o.depth, o.nd
    NA = NL - ND
    assert ND >= DEP and NA % 2 == 0
    AB = o.abase
    units = [u for u in range(16) if not AB <= u < AB + NA]
    koff = [u*3*M for u in units]
    C = o.c
    if C > 1:
        assert ND % C == 0 and units == list(range(ND))
        koff = [(k % C)*12*K + (k // C)*3*M*C for k in range(ND)]
        if o.dp5: koff = [(k % C)*3*K + (k // C)*3*M*C for k in range(ND)]
    D0, ACC, T0 = 16, 8, 80
    diag = o.stamps or o.diag
    def stamp(i):
        if diag: a(f"s_memrealtime s[{60+2*i}:{61+2*i}]")
        if o.cyc and o.diag and i in tuple(map(int, o.diag.split(",")))[:2]: a(f"s_memtime s[{76+2*i}:{77+2*i}]")
    def flush_stamps(ctrl):
        a("s_waitcnt lgkmcnt(0)")
        a("s_mov_b64 exec, 1")
        a("s_lshl_b32 s59, s2, 10")
        a(f"s_add_u32 s59, s59, {STAMPS}")
        if not ctrl:
            a("s_lshl_b32 s58, s3, 6")
            a("s_add_u32 s59, s59, s58")
            a("s_add_u32 s59, s59, 64")
        a("v_mov_b32 v2, s59")
        for i in range(8):
            a(f"v_mov_b32 v4, s{60+2*i}")
            a(f"v_mov_b32 v5, s{61+2*i}")
            a(f"buffer_store_dwordx2 v[4:5], v2, s[28:31], 0 offen offset:{i*8}")
            a("s_nop 1")
    def xstamp(i):
        if o.xs: a(f"s_memrealtime s[{80+2*i}:{81+2*i}]")
    def budget(label):
        a(f"""
s_sub_u32 s19, s19, 1
s_cmp_lt_i32 s19, 0
s_cbranch_scc1 {label}
""")
    def region(dst, src, tmp):
        return (f"s_lshr_b32 {dst}, {src}, 3\ns_lshl_b32 {dst}, {dst}, 2\ns_and_b32 {tmp}, {src}, 3\n"
                f"s_add_u32 {dst}, {dst}, {tmp}\ns_lshl_b32 {dst}, {dst}, 1\ns_bfe_u32 {tmp}, {src}, 0x10002\n"
                f"s_add_u32 {dst}, {dst}, {tmp}\ns_lshl_b32 {dst}, {dst}, 13")
    dp5 = f"s_mul_i32 s17, s3, 43\ns_lshr_b32 s17, s17, 7\ns_mul_i32 s17, s17, {3*K*C - 3*K}\ns_add_u32 s16, s16, s17\n" if o.dp5 else ""
    a(f"""
.amdgcn_target "amdgcn-amd-amdhsa--gfx950"
.text
.globl {NAME}
.p2align 8
.type {NAME},@function
{NAME}:
""")
    stamp(0)
    a(f"""
s_load_dwordx2 s[20:21], s[0:1], 0
v_readfirstlane_b32 s3, v0
s_cmpk_ge_u32 s2, {NWG}
s_cbranch_scc1 L_end
s_mul_i32 s16, s2, {12*K*C}
s_mov_b32 s22, {TOTAL}
s_mov_b32 s23, 0x20000
s_lshr_b32 s3, s3, 6
s_cbranch_scc0 L_ctrl
; ---- data waves: v0 = thread 0..767, s3 = wave 0..11, v2 = byte offset of the lane, first loads
v_subrev_u32 v0, 64, v0
s_sub_u32 s3, s3, 1
{dp5}v_lshl_add_u32 v2, v0, 4, s16
s_waitcnt lgkmcnt(0)
""")
    stamp(1)
    def so(k): return "0" if k == 0 else f"s{32+k}"
    def ld(k):
        a(f"buffer_load_dwordx4 v[{D0+4*k}:{D0+4*k+3}], v2, s[20:23], {so(k)} offen{ldf}")
    assert koff[0] == 0
    for k in range(DEP):
        if k: a(f"s_mov_b32 s{32+k}, {koff[k]}")
        ld(k)
    a(f"""
v_mov_b32 v89, {LDS_I}
v_mov_b32 v90, 0
ds_write_b32 v89, v90
s_waitcnt lgkmcnt(0)
s_barrier
""")
    if o.early:
        a("s_branch L_data2")
        a("@CTRL_EARLY@")
        a("L_data2:")
    a(f"""
s_load_dwordx2 s[24:25], s[0:1], 24
s_load_dwordx4 s[12:15], s[0:1], 32
""")
    for k in range(DEP, ND): a(f"s_mov_b32 s{32+k}, {koff[k]}")
    mark_pro0 = len(a.l)
    if NA:
        J = [sum(j << (4*n) for n, j in enumerate(j for j in range(16) if ((3*j + c) >> 3) & 1 == 0)) for c in range(3)]
        a(f"""
s_mul_i32 s48, s3, 43
s_lshr_b32 s48, s48, 7
s_mul_i32 s49, s48, 3
s_sub_u32 s49, s3, s49
s_lshl_b32 s48, s48, {3 if o.an else 2}
s_waitcnt lgkmcnt(0)
s_bfe_u32 s18, s24, 0x3000a
s_add_u32 s49, s49, s18
s_mul_i32 s50, s49, 43
s_lshr_b32 s50, s50, 7
s_mul_i32 s50, s50, 3
s_sub_u32 s49, s49, s50
s_cmp_eq_u32 s49, 1
s_mov_b32 s50, {J[0]}
s_mov_b32 s51, {J[1]}
s_cselect_b32 s50, s51, s50
s_cselect_b32 s51, {J[2]}, s51
s_cmp_eq_u32 s49, 2
s_cselect_b32 s50, {J[2]}, s50
s_cselect_b32 s51, {J[0]}, s51
s_cselect_b32 s58, 8, 9
s_cselect_b32 s59, 0, s49
s_add_u32 s58, s58, s59
s_lshr_b32 s50, s50, s48
s_lshr_b32 s51, s51, s48
s_and_b32 s52, s50, 15
s_bfe_u32 s53, s50, {0x40004 if o.an else 0x40010}
s_and_b32 s54, s51, 15
s_bfe_u32 s55, s51, {0x40004 if o.an else 0x40010}
s_mul_i32 s52, s52, 3
s_mul_i32 s53, s53, 3
s_mul_i32 s54, s54, 3
s_mul_i32 s55, s55, 3
s_add_u32 s52, s52, s49
s_add_u32 s53, s53, s49
s_add_u32 s54, s54, s58
s_add_u32 s55, s55, s58
s_sub_u32 s52, s52, s18
s_cselect_b32 s50, 48, 0
s_add_u32 s52, s52, s50
s_sub_u32 s53, s53, s18
{"s_cselect_b32 s50, 48, 0" if o.an else ""}
{"s_add_u32 s53, s53, s50" if o.an else ""}
s_sub_u32 s54, s54, s18
s_sub_u32 s55, s55, s18
s_lshr_b32 s48, s2, 3
s_lshl_b32 s48, s48, 2
s_and_b32 s49, s2, 3
s_add_u32 s48, s48, s49
s_mul_i32 s48, s48, {48*K}
s_lshl_b32 s49, s3, 10
s_add_u32 s49, s49, s16
s_lshl_b32 s52, s52, 10
s_lshl_b32 s53, s53, 10
s_lshl_b32 s54, s54, 10
s_lshl_b32 s55, s55, 10
s_sub_u32 s52, s52, s49
s_sub_u32 s53, s53, s49
s_sub_u32 s54, s54, s49
s_sub_u32 s55, s55, s49
s_and_b32 s49, s24, 0x1fffff
""")
    a(f"""
s_mov_b32 s26, {TOTAL}
s_mov_b32 s27, 0x20000
s_mov_b32 s30, 0x200000
s_mov_b32 s31, 0x20000
s_mov_b32 s10, 48
s_mov_b32 s11, 0x20000
s_mov_b32 s19, {o.spin}
s_mov_b32 s56, 0xcccccccc
s_mov_b32 s57, 0xcccccccc
v_mul_u32_u24 v3, 43691, v0
v_lshrrev_b32 v3, 19, v3
v_mul_u32_u24 v4, 12, v3
v_sub_u32 v4, v0, v4
v_add_lshl_u32 v5, v0, v3, 4
v_lshlrev_b32 v6, 5, v4
v_add_u32 v6, {LDS_S}, v6
v_and_b32 v1, 63, v0
v_and_b32 v4, 1, v1
v_lshrrev_b32 v3, 1, v1
v_mul_u32_u24 v3, 208, v3
v_mul_u32_u24 v7, {PLANE}, v4
s_lshl_b32 s17, s3, 4
v_add3_u32 v3, v3, v7, s17
v_lshlrev_b32 v7, 4, v4
v_and_b32 v80, 2, v1
v_lshl_add_u32 v7, v80, 2, v7
v_and_b32 v80, 4, v1
v_add_u32 v7, v7, v80
{region("s17", "s3", "s8")}
s_lshl_b32 s8, s2, 5
s_add_u32 s17, s17, s8
v_add_u32 v7, s17, v7
v_mov_b32 v4, 0
s_waitcnt lgkmcnt(0)
s_mov_b32 s8, s12
s_mov_b32 s9, s13
s_mov_b32 s28, s14
s_mov_b32 s29, s15
""")
    if o.less:
        a("s_getreg_b32 s17, hwreg(HW_REG_XCC_ID, 0, 1)")
        if o.lessodd: a("s_xor_b32 s17, s17, 1")
        a("s_mov_b32 vcc_hi, 0\ns_mov_b32 vcc_lo, s17")
    if o.st2 == "p": stamp(2)
    mark_pro = len(a.l)
    def infowait():
        a(f"""
L_iw:
ds_read_b32 v90, v89
""")
        budget("L_iok")
        a(f"""
s_waitcnt lgkmcnt(0)
v_readfirstlane_b32 s58, v90
s_bitcmp1_b32 s58, 31
s_cbranch_scc0 L_iw
L_iok:
""")
        if o.st2 == "i": stamp(2)
        NK = NA//2
        groups, kk = [], 0
        while kk < NK:
            g = min(o.ag, NK - kk); groups.append((kk, g)); kk += g
        for kk0, g in groups:
            a(f"s_mul_i32 s59, s48, {g}")
            a(f"s_add_u32 s59, s59, {AB*3*M + kk0*6*M}")
            for j in range(g):
                k = ND + 2*(kk0 + j)
                if j: a(f"s_add_u32 s59, s59, {48*K}")
                a(f"""
s_add_u32 s50, s59, s49
s_lshr_b32 s50, s50, 21
s_bitcmp1_b32 s58, s50
s_cselect_b32 s{32+k}, s54, s52
s_cselect_b32 s{33+k}, s55, s53
s_add_u32 s{32+k}, s{32+k}, s59
s_add_u32 s{33+k}, s{33+k}, s59
""")
    q = [("ld", k) for k in range(DEP)]
    def waitfor(item):
        n = len(q) - 1 - q.index(item)
        a(f"s_waitcnt vmcnt({n})")
        del q[:q.index(item)+1]
    late = []
    if o.late:
        late = a.l[mark_pro0:mark_pro]
        del a.l[mark_pro0:mark_pro]
    for k in range(NL):
        if NA and k + DEP == ND:
            a.l.extend(late)
            infowait()
        waitfor(("ld", k))
        if o.less and k + DEP < NL:
            a(f"s_cbranch_vccnz L_full{k}")
            a(f"s_waitcnt vmcnt({len(q) - o.less})")
            a(f"L_full{k}:")
        if k + DEP < NL:
            if k + DEP == NL-1:
                a(f"buffer_load_dword v88, v4, s[8:11], 0 offen{pol}")
                q.append(("fl", 0))
            ld(k + DEP); q.append(("ld", k + DEP))
            if k + DEP == NL-1 and not o.st2: stamp(2)
        for i in range(4):
            d = D0 + 4*k + i
            r = ACC if k == 0 else T0
            a(f"v_lshlrev_b32 v{r+2*i}, 16, v{d}")
            a(f"v_and_b32 v{r+2*i+1}, 0xffff0000, v{d}")
        if k:
            for i in range(4):
                a(f"v_pk_add_f32 v[{ACC+2*i}:{ACC+2*i+1}], v[{ACC+2*i}:{ACC+2*i+1}], v[{T0+2*i}:{T0+2*i+1}]")
    a(f"""
ds_write_b128 v5, v[8:11]
ds_write_b128 v5, v[12:15] offset:{PLANE}
v_cmp_gt_u32 vcc, 96, v88
s_cbranch_vccnz L_flagwait
L_flagok:
s_waitcnt lgkmcnt(0)
""")
    stamp(3)
    a(f"""
s_barrier
ds_read_b128 v[8:11], v3
ds_read_b128 v[12:15], v3 offset:{32*208}
s_waitcnt lgkmcnt(0)
v_pk_add_f32 v[8:9], v[8:9], v[12:13]
v_pk_add_f32 v[10:11], v[10:11], v[14:15]
s_nop 0
v_add_f32_dpp v8, v8, v8 quad_perm:[2,3,0,1] {DPPF}
v_add_f32_dpp v9, v9, v9 quad_perm:[2,3,0,1] {DPPF}
v_add_f32_dpp v10, v10, v10 quad_perm:[2,3,0,1] {DPPF}
v_add_f32_dpp v11, v11, v11 quad_perm:[2,3,0,1] {DPPF}
v_cndmask_b32 v8, v8, v10, s[56:57]
v_cndmask_b32 v9, v9, v11, s[56:57]
s_nop 0
v_add_f32_dpp v10, v8, v8 row_shl:4 row_mask:0xf bank_mask:0x5
v_add_f32_dpp v10, v9, v9 row_shr:4 row_mask:0xf bank_mask:0xa
s_nop 1
v_add_f32_dpp v10, v10, v10 row_ror:8 {DPPF}
s_nop 1
v_permlane16_swap_b32 v10, v11
v_add_f32 v10, v10, v11
s_nop 1
v_permlane32_swap_b32 v10, v11
v_add_f32 v10, v10, v11
s_mov_b64 exec, 0xff
buffer_store_dword v10, v7, s[28:31], 0 offen{pub}
""")
    stamp(4)
    order = list(range(NL))
    if o.sorder == "i":
        dfl, aw = list(range(ND)), list(range(ND, NL))
        order = []
        while dfl or aw:
            if aw and len(aw)*ND >= len(dfl)*NA: order.append(aw.pop(0))
            else: order.append(dfl.pop(0))
    elif o.sorder == "r": order = order[::-1]
    elif o.sorder and o.sorder[0] in "da":
        dfl, aw = list(range(ND)), list(range(ND, NL)); order = []
        for ch in o.sorder: order.append(dfl.pop(0) if ch == "d" else aw.pop(0))
        assert len(order) == NL
    pre = []
    if o.pre:
        src = {"a": list(range(NL-1, -1, -1)), "d": list(range(NL)), "o": order[::-1]}[o.presel]
        pre = sorted(src[:o.pre])
        order = [k for k in order if k not in pre] + pre
    a("s_mov_b64 exec, -1")
    for k in pre:
        a(f"buffer_store_dwordx4 v[{D0+4*k}:{D0+4*k+3}], v2, s[24:27], {so(k)} offen{POL[o.prepol]}")
    def unpack(k):
        for i in range(4):
            d = D0 + 4*k + i
            a(f"v_lshlrev_b32 v{T0+2*i}, 16, v{d}")
            a(f"v_and_b32 v{T0+2*i+1}, 0xffff0000, v{d}")
    unpack(order[0])
    a(f"""
s_barrier
ds_read_b128 v[8:11], v6
ds_read_b128 v[12:15], v6 offset:16
s_waitcnt lgkmcnt(0)
""")
    stamp(5)
    for n, k in enumerate(order):
        t = T0
        if pre and k == pre[0]: a(f"s_waitcnt vmcnt({n})")
        if n: unpack(k)
        for i in range(4):
            a(f"v_pk_mul_f32 v[{t+2*i}:{t+2*i+1}], v[{t+2*i}:{t+2*i+1}], v[{ACC+2*i}:{ACC+2*i+1}]")
        for i in range(4):
            d = D0 + 4*k + i
            a(f"v_cvt_pk_bf16_f32 v{d}, v{t+2*i}, v{t+2*i+1}")
        if o.sdepth and n >= o.sdepth: a(f"s_waitcnt vmcnt({o.sdepth-1})")
        a(f"buffer_store_dwordx4 v[{D0+4*k}:{D0+4*k+3}], v2, s[24:27], {so(k)} offen{POL[o.postpol] if k in pre else stk2(n, k)}")
    if diag:
        stamp(6)
        a("s_waitcnt vmcnt(0)")
        stamp(7)
    if o.stamps: flush_stamps(False)
    if o.diag:
        i, j, Kk = map(int, o.diag.split(","))
        a(f"""
s_waitcnt lgkmcnt(0)
s_lshr_b32 s56, s58, 1
s_xor_b32 s56, s56, s58
s_bfe_u32 s57, s56, 0x10010
s_and_b32 s56, s56, 1
s_mul_i32 s56, s56, {o.diagok}
s_mul_i32 s57, s57, {2*o.diagok}
s_sub_u32 s58, s{(76 if o.cyc else 60)+2*j}, s{(76 if o.cyc else 60)+2*i}
{f"s_sub_u32 s58, {o.neg}, s58" if o.neg else ""}
{f"s_getreg_b32 s59, hwreg(HW_REG_XCC_ID, 0, 3)" if o.xsel else ""}
{f"s_bitcmp1_b32 {o.xsel}, s59" if o.xsel else ""}
{f"s_cselect_b32 s58, s58, 0" if o.xsel else ""}
{f"s_cmp_gt_u32 s58, {o.theta}" if o.theta else ""}
{"s_cselect_b32 s58, 10000, 0" if o.theta else f"s_mul_i32 s58, s58, {Kk}"}
s_add_u32 s58, s58, s56
s_add_u32 s58, s58, s57
s_min_u32 s58, s58, 400000
L_spin:
s_memrealtime s[56:57]
s_waitcnt lgkmcnt(0)
s_sub_u32 s56, s56, s74
s_cmp_lt_u32 s56, s58
s_cbranch_scc1 L_spin
""")
    a(f"""
L_end:
s_endpgm
L_flagwait:
buffer_load_dword v88, v4, s[8:11], 0 offen{pol}
""")
    budget("L_flagok")
    a(f"""
s_waitcnt vmcnt(0)
v_cmp_gt_u32 vcc, 96, v88
s_cbranch_vccnz L_flagwait
s_branch L_flagok
""")
    prefetch = ""
    if o.pf:
        prefetch = f"""s_getpc_b64 s[56:57]
L_pc:
v_lshlrev_b32 v20, 7, v0
s_sub_u32 s56, s56, L_pc-{NAME}
s_subb_u32 s57, s57, 0
v_min_u32 v20, L_last-{NAME}, v20
global_load_dword v21, v20, s[56:57]
"""
    tlb = ""
    if o.tlb:
        tlb = f"""s_load_dwordx2 s[52:53], s[0:1], 24
s_mov_b32 s54, {TOTAL}
s_mov_b32 s55, 0x20000
s_lshl_b32 s17, s2, 7
v_lshlrev_b32 v22, 21, v0
v_add_u32 v22, s17, v22
s_waitcnt lgkmcnt(0)
buffer_load_dword v23, v22, s[52:55], 0 offen nt
"""
    dry0 = ""
    if o.dry:
        dry0 = """s_mov_b64 s[94:95], 0
s_mov_b64 exec, 0
s_branch L_gdone
L_dryret:
s_mov_b64 s[94:95], -1
s_mov_b64 exec, -1
"""
    reps = [192, 128, 64] if o.nrep == 3 else [192, 64] if o.nrep == 2 else [192]
    atoms = "".join(f"s_atomic_add s50, s[12:13], {r}\n" for r in reps)
    V0 = o.v0
    slp = ""
    slp += "; back off until the votes should be in (early reads only slow the adds down), then read a replica\n"
    if o.sleep: slp += f"s_sub_u32 s40, s2, {V0}\ns_cmp_lt_u32 s40, {NV}\ns_cbranch_scc1 L_nosleep\ns_sleep {o.sleep}\nL_nosleep:\n"
    if o.sleep2: slp += f"s_sleep {o.sleep2}\n"
    if o.novote: atoms = ""
    mark0 = len(a.l)
    def goff(i): return ("0" if i < 4 else "s44") + f" offen offset:{(i & 3)*1024}"
    a(f"""
L_ctrl:
s_load_dwordx4 s[12:15], s[0:1], 32
s_load_dwordx2 s[26:27], s[0:1], 24
s_load_dwordx4 s[36:39], s[0:1], 8
{prefetch}s_setprio 3
s_sub_u32 s40, s2, {V0}
s_mov_b32 s45, {o.pga*2*M}
s_bitcmp1_b32 s40, 0
s_cselect_b32 s45, {o.pgb*2*M}, s45
s_lshr_b32 s42, s40, 1
s_cmp_ge_u32 s40, 12
s_cselect_b32 s45, 0x80000, s45
s_cselect_b32 s42, s40, s42
s_and_b32 s41, s42, 1
s_lshl_b32 s46, s42, 14
s_add_u32 s45, s45, s46
s_lshl_b32 s46, s41, 13
s_add_u32 s45, s45, s46
s_xor_b32 s46, s45, 0x2000
s_movk_i32 s6, 0x100
s_mov_b32 s7, 0x20000
s_cmp_ge_u32 s40, {NV}
s_waitcnt lgkmcnt(0)
s_mov_b32 s4, s12
s_mov_b32 s5, s13
s_cbranch_scc1 L_noprobe
s_sub_u32 s43, s26, s20
s_sub_u32 s43, s43, 0xc00
s_and_b32 s43, s43, 0x1fff
s_cmp_le_u32 s43, 0x800
s_cselect_b32 s42, 1, s41
s_cmp_eq_u32 s42, 1
s_cselect_b64 s[54:55], s[26:27], s[20:21]
s_cmp_ge_u32 s40, 12
s_cselect_b64 s[54:55], s[14:15], s[54:55]
.p2align 5
s_load_dword s47, s[54:55], s45 glc
s_load_dword s48, s[54:55], s46 glc
s_waitcnt lgkmcnt(1)
""")
    for i in range(o.gap): a("s_getreg_b32 s51, hwreg(HW_REG_IB_STS, 8, 4)")
    a(f"""
; vote word: 4-bit sums x.lo x.hi out.lo out.hi ws, arrivals at bit 20, die rotation at bit 28
s_getreg_b32 s49, hwreg(HW_REG_XCC_ID, 0, 3)
s_sub_u32 s50, s49, s2
s_and_b32 s50, s50, 7
s_lshl_b32 s50, s50, 28
s_cmp_eq_u32 s40, 0
s_cselect_b32 s50, s50, 0
s_bitset1_b32 s50, 20
s_lshr_b32 s49, s49, 2
s_xor_b32 s49, s49, s41
s_cmp_eq_u32 s51, 0
s_cselect_b32 s51, 1, 0
s_xor_b32 s49, s49, s51
s_and_b32 s51, s40, 1
s_lshl_b32 s42, s42, 1
s_add_u32 s42, s42, s51
s_cmp_ge_u32 s40, 12
s_cselect_b32 s42, 4, s42
s_lshl_b32 s42, s42, 2
s_lshl_b32 s49, s49, s42
s_or_b32 s50, s50, s49
{atoms}L_noprobe:
s_barrier
v_mov_b32 v13, {LDS_I}
""")
    xstamp(0)
    a(f"""
s_sub_u32 s34, s2, 32
s_lshr_b32 s35, s34, 4
{region("s16", "s35", "s17")}
s_lshl_b32 s17, s34, 9
s_and_b32 s17, s17, 0x1c00
s_add_u32 s16, s16, s17
v_lshl_add_u32 v2, v0, 4, s16
v_mov_b32 v16, -1
v_mov_b32 v17, -1
v_mov_b32 v18, -1
v_mov_b32 v19, -1
v_bfe_u32 v3, v0, 1, 3
v_lshrrev_b32 v5, 4, v0
v_and_b32 v6, 1, v0
v_lshl_add_u32 v5, v5, 1, v6
v_mul_u32_u24 v5, {CS}, v5
v_lshl_add_u32 v14, v3, 2, v5
s_lshl_b32 s17, s35, 7
s_add_u32 s17, s17, {SLOT2}
v_add_u32 v4, s17, v14
s_mov_b32 s28, s14
s_mov_b32 s29, s15
s_mov_b32 s30, 0x200000
s_mov_b32 s31, 0x20000
s_movk_i32 s44, 0x1000
s_sub_u32 s43, s26, s20
s_and_b32 s43, s43, 0x1fff
s_mov_b32 s8, s38
s_mov_b32 s9, s39
s_mov_b32 s10, 1152
s_mov_b32 s11, 0x20000
s_mov_b32 s24, s36
s_mov_b32 s25, s37
s_mov_b32 s26, 1152
s_mov_b32 s27, 0x20000
s_mov_b32 s19, {o.spin}
v_lshlrev_b32 v1, 2, v0
s_bitcmp1_b32 s34, 0
s_cselect_b32 s34, -1, s34
s_cmp_ge_u32 s34, 192
s_cbranch_scc1 L_noinit
buffer_store_dwordx4 v[16:19], v2, s[28:31], 0 offen{pub}
s_and_b32 s17, s34, 15
s_cbranch_scc1 L_noinit
buffer_store_dword v16, v4, s[28:31], 0 offen{pub}
L_noinit:
""")
    def valid():
        a("s_and_b32 s92, s76, 0x0f000000")
    a(f"""
{slp}s_waitcnt lgkmcnt(0)
""")
    xstamp(1)
    stamp(1)
    for t in range(len(reps)):
        a(f"s_load_dword s76, s[12:13], {reps[t]}")
        a("s_waitcnt lgkmcnt(0)")
        if t < 2: xstamp(2+t)
        if o.xs: a(f"s_mov_b32 s98, {t}")
        valid()
        a("s_cbranch_scc1 L_info")
    a(f"""
v_mov_b32 v11, 192
L_ipoll:
{"s_add_u32 s98, s98, 1" if o.xs else ""}
buffer_load_dword v12, v11, s[4:7], 0 offen{pol}
""")
    budget("L_info")
    a("s_waitcnt vmcnt(0)")
    a("v_readfirstlane_b32 s76, v12")
    valid()
    a(f"""
s_cbranch_scc0 L_ipoll
L_info:
s_bfe_u32 s40, s76, 0x3001c
s_add_u32 s40, s40, s2
s_and_b32 s40, s40, 7
s_lshr_b32 s41, s40, 2
s_bitcmp1_b32 s2, 3
s_cselect_b32 s42, -1, 0
s_add_u32 s45, s76, 0x6666
s_lshr_b32 s46, s45, 8
s_xor_b32 s48, s46, s45
s_cmp_gt_u32 s43, 0x1400
s_cselect_b32 s46, -1, 0
s_xor_b32 s48, s48, s46
s_add_u32 s46, s76, 0x4400
s_add_u32 s47, s76, 0x5500
s_xor_b32 s47, s47, s46
s_lshr_b32 s47, s47, 8
s_sub_u32 s49, s43, 0xc00
s_cmp_le_u32 s49, 0x800
s_cselect_b32 s48, s47, s48
s_cselect_b32 s49, s46, s45
{"s_mov_b32 s99, s48" if o.ispin else ""}
s_mov_b32 s47, 0xaaaaaaaa
{"s_not_b32 s49, s49" if o.invert else ""}
s_bitcmp1_b32 s49, 11
s_cselect_b32 s45, 0x55555555, s47
s_bitcmp1_b32 s48, 3
s_cselect_b32 s45, s42, s45
s_and_b32 s45, s45, 0xffff
s_bitcmp1_b32 s49, 15
s_cselect_b32 s46, 0x55555555, s47
s_bitcmp1_b32 s48, 7
s_cselect_b32 s46, s42, s46
s_and_b32 s46, s46, 0x3ff0000
s_or_b32 s45, s45, s46
s_mul_i32 s46, s41, 0x3ffffff
s_xor_b32 s45, s45, s46
s_bitset1_b32 s45, 31
{"s_mov_b32 s98, s45" if o.check else ""}
v_mov_b32 v12, s45
ds_write_b32 v13, v12
""")
    stamp(2)
    if o.early:
        a("s_branch L_ctrl2")
        early = a.l[mark0:]
        del a.l[mark0:]
        i = a.l.index("    @CTRL_EARLY@")
        a.l[i:i+1] = early
        a("L_ctrl2:")
    if o.stamps: a("s_mov_b32 s96, s45\ns_bfe_u32 s97, s76, 0x40010")
    a(f"""
s_cmp_ge_u32 s34, 192
s_cbranch_scc1 L_noflag
s_mov_b32 s33, 1
s_waitcnt vmcnt(0)
s_atomic_add s33, s[12:13], 0
L_noflag:
""")
    for j in range(6):
        a(f"buffer_load_dword v{52+2*j}, v1, s[8:11], 0 offen offset:{j*192}")
    a(f"""
{tlb}s_add_u32 s46, s76, 0x50000
s_bfe_u32 s46, s46, 0x10013
s_bfe_u32 s47, s2, 0x10002
s_xor_b32 s47, s47, s46
s_xor_b32 s47, s47, s41
s_lshl_b32 s47, s47, 2
s_xor_b32 s18, s2, s47
s_lshl_b32 s46, s46, 2
s_xor_b32 s40, s40, s46
{region("s16", "s18", "s17")}
v_lshl_add_u32 v2, v0, 4, s16
s_lshl_b32 s17, s18, 7
s_add_u32 s17, s17, {SLOT2}
v_add_u32 v4, s17, v14
v_and_b32 v5, 1, v0
v_lshrrev_b32 v6, 4, v0
v_lshl_add_u32 v5, v5, 2, v6
s_lshl_b32 s17, s18, 3
v_add_u32 v5, s17, v5
v_mad_u32_u24 v5, v5, 6, v3
v_lshlrev_b32 v5, 1, v5
v_cmp_gt_u32 vcc, 6, v3
v_mov_b32 v6, 0x10000
s_mul_i32 s17, s40, {CS}
v_cndmask_b32 v5, v6, v5, vcc
buffer_load_ushort v10, v5, s[24:27], 0 offen
s_add_u32 s17, s17, {SLOT2}
v_lshrrev_b32 v7, 3, v0
v_lshlrev_b32 v7, 7, v7
v_and_b32 v8, 7, v0
v_lshl_add_u32 v7, v8, 2, v7
v_add_u32 v7, s17, v7
v_mov_b32 v9, 0x7fffffc0
v_cmp_gt_u32 vcc, 32, v0
v_add_u32 v8, {8*S2}, v7
s_nop 0
v_cndmask_b32 v8, v9, v8, vcc
v_lshlrev_b32 v9, 3, v0
v_add_u32 v9, {LDS_S}, v9
s_waitcnt vmcnt(0) lgkmcnt(0)
""")
    for j in range(6):
        a(f"v_and_b32 v{53+2*j}, 0xffff0000, v{52+2*j}")
        a(f"v_lshlrev_b32 v{52+2*j}, 16, v{52+2*j}")
    a(f"""
v_lshlrev_b32 v10, 16, v10
{dry0}s_cmp_ge_u32 s18, 12
s_barrier
""")
    stamp(3)
    a("s_cbranch_scc1 L_poll2")
    G = 20
    def gl(i): a(f"buffer_load_dwordx4 v[{G+4*i}:{G+4*i+3}], v2, s[28:31], {goff(i)}{pol}")
    def pk(d, x, y):
        a(f"v_pk_add_f32 v[{d}:{d+1}], v[{x}:{x+1}], v[{y}:{y+1}]")
        a(f"v_pk_add_f32 v[{d+2}:{d+3}], v[{x+2}:{x+3}], v[{y+2}:{y+3}]")
    for i in range(8): gl(i)
    a("s_mov_b64 s[42:43], -1")
    a("s_branch L_gsum")
    a("L_gagain:")
    a("s_mov_b64 exec, s[40:41]")
    for i in range(8): gl(i)
    a(f"v_max3_u32 v12, v{G}, v{G+1}, v{G+2}")
    for r in range(G+3, G+31, 2): a(f"v_max3_u32 v12, v12, v{r}, v{r+1}")
    a(f"v_max_u32 v12, v12, v{G+31}")
    a("v_cmp_eq_u32 s[42:43], -1, v12")
    budget("L_gdone")
    if o.g2:
        for i in range(8): gl(i)
        a("L_gsum2:")
        a("s_waitcnt vmcnt(14)"); pk(16, G, G+4)
        a("s_waitcnt vmcnt(12)"); pk(64, G+8, G+12); pk(16, 16, 64)
        a("s_waitcnt vmcnt(10)"); pk(68, G+16, G+20)
        a("s_waitcnt vmcnt(8)"); pk(72, G+24, G+28); pk(68, 68, 72); pk(16, 16, 68)
        a("s_branch L_gchk")
    a("L_gsum:")
    a("s_waitcnt vmcnt(6)"); pk(16, G, G+4)
    a("s_waitcnt vmcnt(4)"); pk(64, G+8, G+12); pk(16, 16, 64)
    a("s_waitcnt vmcnt(2)"); pk(68, G+16, G+20)
    a("s_waitcnt vmcnt(0)"); pk(72, G+24, G+28); pk(68, 68, 72); pk(16, 16, 68)
    a("L_gchk:")
    a(f"""
v_cmp_u_f32 vcc, v16, v17
v_cmp_u_f32 s[40:41], v18, v19
s_or_b64 s[40:41], s[40:41], vcc
s_cbranch_scc0 L_gdone
s_cmp_lg_u64 s[42:43], 0
s_cbranch_scc1 L_gagain
L_gdone:
s_mov_b64 exec, {"s[94:95]" if o.dry else "-1"}
v_permlane32_swap_b32 v16, v18
v_permlane32_swap_b32 v17, v19
v_add_f32 v16, v16, v18
v_add_f32 v17, v17, v19
s_nop 1
v_permlane16_swap_b32 v16, v17
v_add_f32 v16, v16, v17
s_nop 1
v_add_f32_dpp v16, v16, v16 row_ror:8 {DPPF}
s_nop 1
v_add_f32_dpp v16, v16, v16 row_ror:4 {DPPF}
s_nop 1
v_add_f32_dpp v16, v16, v16 row_ror:2 {DPPF}
v_mul_f32 v16, 0x36800000, v16
v_cvt_pk_bf16_f32 v16, v16, v16
v_lshlrev_b32 v16, 16, v16
v_mul_f32 v16, v16, v10
s_nop 1
v_add_f32_dpp v16, v16, v16 quad_perm:[1,0,3,2] {DPPF}
v_mov_b32 v17, v16
s_nop 1
v_permlane16_swap_b32 v16, v17
v_add_f32 v16, v16, v17
v_mov_b32 v17, v16
s_nop 1
v_permlane32_swap_b32 v16, v17
v_add_f32 v16, v16, v17
buffer_store_dword v16, v4, s[28:31], 0 offen{pub}
""")
    stamp(4)
    a(f"""
L_poll2:
buffer_load_dword v16, v7, s[28:31], 0 offen{pol}
buffer_load_dword v17, v8, s[28:31], 0 offen{pol}
""")
    budget("L_p2done")
    a(f"""
s_waitcnt vmcnt(0)
v_max_u32 v12, v16, v17
v_cmp_eq_u32 vcc, -1, v12
s_cbranch_vccnz L_poll2
L_p2done:
s_waitcnt vmcnt(0)
""")
    stamp(5)
    a(f"""
v_add_f32 v16, v16, v17
s_nop 1
v_add_f32_dpp v16, v16, v16 row_ror:8 {DPPF}
v_mov_b32 v17, v16
s_nop 1
v_permlane16_swap_b32 v16, v17
v_add_f32 v16, v16, v17
v_mov_b32 v17, v16
s_nop 1
v_permlane32_swap_b32 v16, v17
v_add_f32 v16, v16, v17
v_cvt_pk_bf16_f32 v16, v16, v16
v_lshlrev_b32 v16, 16, v16
v_mul_f32 v17, 0xbfb8aa3b, v16
v_exp_f32 v17, v17
s_nop 0
v_add_f32 v17, 1.0, v17
v_rcp_f32 v17, v17
s_nop 0
v_mul_f32 v16, v16, v17
v_cvt_pk_bf16_f32 v16, v16, v16
v_lshlrev_b32 v16, 16, v16
s_nop 1
v_mul_f32_dpp v18, v16, v52 row_newbcast:0 {DPPF}
v_mul_f32_dpp v19, v16, v53 row_newbcast:0 {DPPF}
""")
    for j in range(1, 6):
        a(f"v_fmac_f32_dpp v18, v16, v{52+2*j} row_newbcast:{j} {DPPF}")
        a(f"v_fmac_f32_dpp v19, v16, v{53+2*j} row_newbcast:{j} {DPPF}")
    a(f"""
v_cvt_pk_bf16_f32 v18, v18, v19
v_and_b32 v19, 0xffff0000, v18
v_lshlrev_b32 v18, 16, v18
v_mul_f32 v19, 0xbfb8aa3b, v19
v_mul_f32 v18, 0xbfb8aa3b, v18
v_exp_f32 v19, v19
v_exp_f32 v18, v18
v_add_f32 v19, 1.0, v19
v_add_f32 v18, 1.0, v18
v_rcp_f32 v19, v19
v_rcp_f32 v18, v18
s_nop 0
v_cvt_pk_bf16_f32 v18, v18, v19
v_and_b32 v19, 0xffff0000, v18
v_lshlrev_b32 v18, 16, v18
ds_write_b64 v9, v[18:19]
{"s_cbranch_execz L_dryret" if o.dry else ""}
s_waitcnt lgkmcnt(0)
""")
    stamp(6)
    a("s_barrier")
    if o.check:
        a(f"""
s_cmp_lg_u32 s2, 0
s_cbranch_scc1 L_nocheck
s_load_dwordx2 s[54:55], s[0:1], 24
s_memrealtime s[58:59]
s_waitcnt lgkmcnt(0)
L_pw:
s_memrealtime s[60:61]
s_waitcnt lgkmcnt(0)
s_sub_u32 s60, s60, s58
s_cmp_lt_u32 s60, 2500
s_cbranch_scc1 L_pw
s_mov_b32 s70, 0
s_mov_b32 s62, 0
s_mov_b32 s63, 0
L_pl:
s_add_u32 s64, s63, 0x2000
s_load_dword s65, s[54:55], s63 glc
s_load_dword s66, s[54:55], s64 glc
s_waitcnt lgkmcnt(0)
s_memtime s[58:59]
s_waitcnt lgkmcnt(0)
""")
        for r in range(4): a(f"s_load_dword s65, s[54:55], s63 glc\ns_waitcnt lgkmcnt(0)")
        a("s_memtime s[60:61]\ns_waitcnt lgkmcnt(0)")
        for r in range(4): a(f"s_load_dword s65, s[54:55], s64 glc\ns_waitcnt lgkmcnt(0)")
        a(f"""
s_memtime s[66:67]
s_waitcnt lgkmcnt(0)
s_sub_u32 s66, s66, s60
s_sub_u32 s60, s60, s58
s_cmp_gt_u32 s60, s66
s_cselect_b32 s65, 1, 0
s_lshl_b32 s65, s65, s62
s_or_b32 s70, s70, s65
s_add_u32 s63, s63, 0x200000
s_add_u32 s62, s62, 1
s_cmp_lt_u32 s62, 24
s_cbranch_scc1 L_pl
s_xor_b32 s72, s70, s98
s_and_b32 s72, s72, 0xfffe00
s_bcnt1_i32_b32 s74, s72
v_mov_b32 v11, 48
v_mov_b32 v20, s70
v_mov_b32 v21, s98
v_mov_b32 v22, s76
v_mov_b32 v23, s74
s_mov_b64 exec, 1
buffer_store_dwordx4 v[20:23], v11, s[4:7], 0 offen
s_mul_i32 s74, s74, 10000
s_memrealtime s[78:79]
s_waitcnt lgkmcnt(0)
L_pv:
s_memrealtime s[80:81]
s_waitcnt lgkmcnt(0)
s_sub_u32 s80, s80, s78
s_cmp_lt_u32 s80, s74
s_cbranch_scc1 L_pv
L_nocheck:
""")
    if o.ispin:
        if o.ispin == "ok": a("s_andn2_b32 s56, 10, s99\ns_bcnt1_i32_b32 s56, s56")
        elif o.ispin == "okA": a("s_bfe_u32 s56, s99, 0x10001\ns_xor_b32 s56, s56, 1")
        elif o.ispin.startswith("ptr"):
            _, off, sh, w = o.ispin.split(",")
            a(f"s_load_dwordx2 s[56:57], s[0:1], {off}\ns_waitcnt lgkmcnt(0)\ns_bfe_u32 s56, s56, {(int(w) << 16) | int(sh)}")
        elif o.ispin == "rot": a("s_bfe_u32 s56, s76, 0x3001c")
        elif o.ispin == "split":
            a("s_lshr_b32 s56, s76, 8\ns_xor_b32 s56, s56, s76\ns_lshr_b32 s57, s76, 16\ns_xor_b32 s57, s57, s76\ns_or_b32 s56, s56, s57\ns_and_b32 s56, s56, 0xaa\ns_bcnt1_i32_b32 s56, s56")
        a(f"""
s_mul_i32 s56, s56, 1000
s_add_u32 s56, s56, 1000
s_memrealtime s[52:53]
s_waitcnt lgkmcnt(0)
L_xspin:
s_memrealtime s[54:55]
s_waitcnt lgkmcnt(0)
s_sub_u32 s54, s54, s52
s_cmp_lt_u32 s54, s56
s_cbranch_scc1 L_xspin
""")
    if o.stamps:
        a("s_getreg_b32 s75, hwreg(HW_REG_XCC_ID)")
        a("s_and_b32 s74, s96, 0xffffff\ns_lshl_b32 s97, s97, 24\ns_or_b32 s74, s74, s97")
        a("s_cmp_ge_u32 s18, 12\ns_cselect_b32 s68, 0, s68\ns_cselect_b32 s69, 0, s69")
        if o.xs:
            a("s_waitcnt lgkmcnt(0)")
            for i in range(8): a(f"s_mov_b32 s{66+i}, s{80+i}")
            a("s_mov_b32 s74, s98")
        flush_stamps(True)
    a(f"""
L_last:
s_endpgm
.section .rodata,"a"
.p2align 6
.amdhsa_kernel {NAME}
.amdhsa_next_free_vgpr 96
.amdhsa_next_free_sgpr {100 if diag or o.check or o.ispin else 96}
.amdhsa_accum_offset 96
.amdhsa_group_segment_fixed_size 0
.amdhsa_kernarg_size 48
.amdhsa_user_sgpr_count 2
.amdhsa_user_sgpr_kernarg_segment_ptr 1
.amdhsa_system_sgpr_workgroup_id_x 1
.amdhsa_float_denorm_mode_32 3
.end_amdhsa_kernel
""")
    kern = f"kernel={NAME} " if o.aslist else ""
    return HEADER + f"; @launch {kern}grid=({NWG},1,1) block=(832,1,1) lds={LDS_BYTES}\n" + DESC + a.text()

if __name__ == "__main__":
    p = argparse.ArgumentParser()
    p.add_argument("-o", default="-")
    p.add_argument("--ld", default="nt")
    p.add_argument("--stmix", default="s")
    p.add_argument("--sorder", default="i")
    p.add_argument("--sdepth", type=int, default=0)
    p.add_argument("--depth", type=int, default=4)
    p.add_argument("--nd", type=int, default=6)
    p.add_argument("--abase", type=int, default=6)
    p.add_argument("--pga", type=int, default=12)
    p.add_argument("--pgb", type=int, default=18)
    p.add_argument("--gap", type=int, default=3)
    p.add_argument("--spin", type=int, default=200000)
    p.add_argument("--stamps", action="store_true")
    p.add_argument("--st2", default="")
    p.add_argument("--diag", default="")
    p.add_argument("--dp5", type=int, default=0)
    p.add_argument("--an", type=int, default=0)
    p.add_argument("--late", type=int, default=0)
    p.add_argument("--novote", action="store_true")
    p.add_argument("--nrep", type=int, default=3)
    p.add_argument("--v0", type=int, default=16)
    p.add_argument("--dry", type=int, default=0)
    p.add_argument("--g2", type=int, default=1)
    p.add_argument("--ag", type=int, default=2)
    p.add_argument("--c", type=int, default=6)
    p.add_argument("--aslist", action="store_true")
    p.add_argument("--neg", type=int, default=0)
    p.add_argument("--xsel", default="")
    p.add_argument("--less", type=int, default=0)
    p.add_argument("--lessodd", action="store_true")
    p.add_argument("--pola", default="n")
    p.add_argument("--pold", default="s")
    p.add_argument("--cyc", action="store_true")
    p.add_argument("--tlb", action="store_true")
    p.add_argument("--theta", type=int, default=0)
    p.add_argument("--invert", action="store_true")
    p.add_argument("--check", default="")
    p.add_argument("--pre", type=int, default=0)
    p.add_argument("--presel", default="a")
    p.add_argument("--prepol", default="s")
    p.add_argument("--postpol", default="s")
    p.add_argument("--diagok", type=int, default=0)
    p.add_argument("--ispin", default="")
    p.add_argument("--xs", action="store_true")
    p.add_argument("--pf", type=int, default=1)
    p.add_argument("--early", type=int, default=1)
    p.add_argument("--sleep", type=int, default=12)
    p.add_argument("--sleep2", type=int, default=12)
    o = p.parse_args()
    t = gen(o)
    if o.o == "-": sys.stdout.write(t)
    else: open(o.o, "w").write(t)
```

```python
import sys, argparse

DESC = """;
;
; One persistent launch, 256 workgroups (one per CU) of 12 data waves + 1 control wave.
;   * every data wave keeps its 16 KiB of x in v16..v79 from the load phase to the store phase,
;   * thread t always holds channels 8*(t%12)..+7, per-lane f32 sums -> LDS -> 96 sums per workgroup;
;   Slots are self-validating: they are set to 0xffffffff first (a counter in d_debug says when), and no
;
"""
HEADER = """; Kernarg layout for this problem (48 bytes, ptrs only, base s[0:1]):
"""
NAME = "standalone__se_block__vision_kernel"
TOTAL = 50331648
NWG = 256
NL = 16
K = 1024
M = 1024 * K
STAMPS = 0x100000
SLOT2 = 0x60000
S2 = 128
CS = 2048
PLANE = 64 * 208 + 128
LDS_S = 2 * PLANE
LDS_I = LDS_S + 512
LDS_BYTES = LDS_I + 64
DPPF = "row_mask:0xf bank_mask:0xf"
NV = 16
V0 = 16

class A:
    def __init__(self): self.l = []
    def __call__(self, s):
        for x in s.strip("\n").split("\n"):
            x = x.strip()
            if not x: continue
            self.l.append(x if x.endswith(":") or x.startswith(".") else "    " + x)
    def text(self): return "\n".join(self.l) + "\n"

def gen(o):
    a = A()
    ldf = (" " + o.ld) if o.ld else ""
    pub = pol = " sc1"
    POL = {"p": "", "n": " nt", "s": " sc1", "t": " sc1 nt", "u": " sc0 sc1", "z": " sc0"}
    def stk(k): return POL[o.stmix[k % len(o.stmix)]]
    def stk2(n, k):
        if not o.pola: return stk(n)
        return POL[o.pola[(k - ND) % len(o.pola)]] if k >= ND else POL[o.pold[k % len(o.pold)]]
    DEP, ND = o.depth, o.nd
    NA = NL - ND
    assert ND >= DEP and NA % 2 == 0
    AB = o.abase
    units = [u for u in range(16) if not AB <= u < AB + NA]
    koff = [u*3*M for u in units]
    C = o.c
    if C > 1:
        assert ND % C == 0 and units == list(range(ND))
        koff = [(k % C)*12*K + (k // C)*3*M*C for k in range(ND)]
        if o.dp5: koff = [(k % C)*3*K + (k // C)*3*M*C for k in range(ND)]
    D0, ACC, T0 = 16, 8, 80
    diag = o.stamps or o.diag
    def stamp(i):
        if diag: a(f"s_memrealtime s[{60+2*i}:{61+2*i}]")
        if o.cyc and o.diag and i in tuple(map(int, o.diag.split(",")))[:2]: a(f"s_memtime s[{76+2*i}:{77+2*i}]")
    def flush_stamps(ctrl):
        a("s_waitcnt lgkmcnt(0)")
        a("s_mov_b64 exec, 1")
        a("s_lshl_b32 s59, s2, 10")
        a(f"s_add_u32 s59, s59, {STAMPS}")
        if not ctrl:
            a("s_lshl_b32 s58, s3, 6")
            a("s_add_u32 s59, s59, s58")
            a("s_add_u32 s59, s59, 64")
        a("v_mov_b32 v2, s59")
        for i in range(8):
            a(f"v_mov_b32 v4, s{60+2*i}")
            a(f"v_mov_b32 v5, s{61+2*i}")
            a(f"buffer_store_dwordx2 v[4:5], v2, s[28:31], 0 offen offset:{i*8}")
            a("s_nop 1")
    def xstamp(i):
        if o.xs: a(f"s_memrealtime s[{80+2*i}:{81+2*i}]")
    def budget(label):
        a(f"""
s_sub_u32 s19, s19, 1
s_cmp_lt_i32 s19, 0
s_cbranch_scc1 {label}
""")
    def region(dst, src, tmp):
        return (f"s_lshr_b32 {dst}, {src}, 3\ns_lshl_b32 {dst}, {dst}, 2\ns_and_b32 {tmp}, {src}, 3\n"
                f"s_add_u32 {dst}, {dst}, {tmp}\ns_lshl_b32 {dst}, {dst}, 1\ns_bfe_u32 {tmp}, {src}, 0x10002\n"
                f"s_add_u32 {dst}, {dst}, {tmp}\ns_lshl_b32 {dst}, {dst}, 13")
    dp5 = f"s_mul_i32 s17, s3, 43\ns_lshr_b32 s17, s17, 7\ns_mul_i32 s17, s17, {3*K*C - 3*K}\ns_add_u32 s16, s16, s17\n" if o.dp5 else ""
    a(f"""
.amdgcn_target "amdgcn-amd-amdhsa--gfx950"
.text
.globl {NAME}
.p2align 8
.type {NAME},@function
{NAME}:
""")
    stamp(0)
    a(f"""
; entry: x pointer straight into its descriptor; surplus workgroups leave; wave 0 is the control wave
s_load_dwordx2 s[20:21], s[0:1], 0
v_readfirstlane_b32 s3, v0
s_cmpk_ge_u32 s2, {NWG}
s_cbranch_scc1 L_end
s_mul_i32 s16, s2, {12*K*C}
s_mov_b32 s22, {TOTAL}
s_mov_b32 s23, 0x20000
s_lshr_b32 s3, s3, 6
s_cbranch_scc0 L_ctrl
; ---- data waves: v0 = thread 0..767, s3 = wave 0..11, v2 = byte offset of the lane, first loads
v_subrev_u32 v0, 64, v0
s_sub_u32 s3, s3, 1
{dp5}v_lshl_add_u32 v2, v0, 4, s16
s_waitcnt lgkmcnt(0)
""")
    stamp(1)
    def so(k): return "0" if k == 0 else f"s{32+k}"
    def ld(k):
        a(f"buffer_load_dwordx4 v[{D0+4*k}:{D0+4*k+3}], v2, s[20:23], {so(k)} offen{ldf}")
    assert koff[0] == 0
    for k in range(DEP):
        if k: a(f"s_mov_b32 s{32+k}, {koff[k]}")
        ld(k)
    a(f"""
v_mov_b32 v89, {LDS_I}
v_mov_b32 v90, 0
ds_write_b32 v89, v90
s_waitcnt lgkmcnt(0)
s_barrier
""")
    if o.early:
        a("s_branch L_data2")
        a("@CTRL_EARLY@")
        a("L_data2:")
    a(f"""
s_load_dwordx2 s[24:25], s[0:1], 24
s_load_dwordx4 s[12:15], s[0:1], 32
""")
    for k in range(DEP, ND): a(f"s_mov_b32 s{32+k}, {koff[k]}")
    mark_pro0 = len(a.l)
    if NA:
        J = [sum(j << (4*n) for n, j in enumerate(j for j in range(16) if ((3*j + c) >> 3) & 1 == 0)) for c in range(3)]
        a(f"""
s_mul_i32 s48, s3, 43
s_lshr_b32 s48, s48, 7
s_mul_i32 s49, s48, 3
s_sub_u32 s49, s3, s49
s_lshl_b32 s48, s48, {3 if o.an else 2}
s_waitcnt lgkmcnt(0)
s_bfe_u32 s18, s24, 0x3000a
s_add_u32 s49, s49, s18
s_mul_i32 s50, s49, 43
s_lshr_b32 s50, s50, 7
s_mul_i32 s50, s50, 3
s_sub_u32 s49, s49, s50
s_cmp_eq_u32 s49, 1
s_mov_b32 s50, {J[0]}
s_mov_b32 s51, {J[1]}
s_cselect_b32 s50, s51, s50
s_cselect_b32 s51, {J[2]}, s51
s_cmp_eq_u32 s49, 2
s_cselect_b32 s50, {J[2]}, s50
s_cselect_b32 s51, {J[0]}, s51
s_cselect_b32 s58, 8, 9
s_cselect_b32 s59, 0, s49
s_add_u32 s58, s58, s59
s_lshr_b32 s50, s50, s48
s_lshr_b32 s51, s51, s48
s_and_b32 s52, s50, 15
s_bfe_u32 s53, s50, {0x40004 if o.an else 0x40010}
s_and_b32 s54, s51, 15
s_bfe_u32 s55, s51, {0x40004 if o.an else 0x40010}
s_mul_i32 s52, s52, 3
s_mul_i32 s53, s53, 3
s_mul_i32 s54, s54, 3
s_mul_i32 s55, s55, 3
s_add_u32 s52, s52, s49
s_add_u32 s53, s53, s49
s_add_u32 s54, s54, s58
s_add_u32 s55, s55, s58
s_sub_u32 s52, s52, s18
s_cselect_b32 s50, 48, 0
s_add_u32 s52, s52, s50
s_sub_u32 s53, s53, s18
{"s_cselect_b32 s50, 48, 0" if o.an else ""}
{"s_add_u32 s53, s53, s50" if o.an else ""}
s_sub_u32 s54, s54, s18
s_sub_u32 s55, s55, s18
s_lshr_b32 s48, s2, 3
s_lshl_b32 s48, s48, 2
s_and_b32 s49, s2, 3
s_add_u32 s48, s48, s49
s_mul_i32 s48, s48, {48*K}
s_lshl_b32 s49, s3, 10
s_add_u32 s49, s49, s16
s_lshl_b32 s52, s52, 10
s_lshl_b32 s53, s53, 10
s_lshl_b32 s54, s54, 10
s_lshl_b32 s55, s55, 10
s_sub_u32 s52, s52, s49
s_sub_u32 s53, s53, s49
s_sub_u32 s54, s54, s49
s_sub_u32 s55, s55, s49
s_and_b32 s49, s24, 0x1fffff
""")
    a(f"""
s_mov_b32 s26, {TOTAL}
s_mov_b32 s27, 0x20000
s_mov_b32 s30, 0x200000
s_mov_b32 s31, 0x20000
s_mov_b32 s10, 48
s_mov_b32 s11, 0x20000
s_mov_b32 s19, {o.spin}
s_mov_b32 s56, 0xcccccccc
s_mov_b32 s57, 0xcccccccc
v_mul_u32_u24 v3, 43691, v0
v_lshrrev_b32 v3, 19, v3
v_mul_u32_u24 v4, 12, v3
v_sub_u32 v4, v0, v4
v_add_lshl_u32 v5, v0, v3, 4
v_lshlrev_b32 v6, 5, v4
v_add_u32 v6, {LDS_S}, v6
v_and_b32 v1, 63, v0
v_and_b32 v4, 1, v1
v_lshrrev_b32 v3, 1, v1
v_mul_u32_u24 v3, 208, v3
v_mul_u32_u24 v7, {PLANE}, v4
s_lshl_b32 s17, s3, 4
v_add3_u32 v3, v3, v7, s17
v_lshlrev_b32 v7, 4, v4
v_and_b32 v80, 2, v1
v_lshl_add_u32 v7, v80, 2, v7
v_and_b32 v80, 4, v1
v_add_u32 v7, v7, v80
{region("s17", "s3", "s8")}
s_lshl_b32 s8, s2, 5
s_add_u32 s17, s17, s8
v_add_u32 v7, s17, v7
v_mov_b32 v4, 0
s_waitcnt lgkmcnt(0)
s_mov_b32 s8, s12
s_mov_b32 s9, s13
s_mov_b32 s28, s14
s_mov_b32 s29, s15
""")
    if o.less:
        a("s_getreg_b32 s17, hwreg(HW_REG_XCC_ID, 0, 1)")
        if o.lessodd: a("s_xor_b32 s17, s17, 1")
        a("s_mov_b32 vcc_hi, 0\ns_mov_b32 vcc_lo, s17")
    if o.st2 == "p": stamp(2)
    mark_pro = len(a.l)
    def infowait():
        a(f"""
L_iw:
ds_read_b32 v90, v89
""")
        budget("L_iok")
        a(f"""
s_waitcnt lgkmcnt(0)
v_readfirstlane_b32 s58, v90
s_bitcmp1_b32 s58, 31
s_cbranch_scc0 L_iw
L_iok:
""")
        if o.st2 == "i": stamp(2)
        NK = NA//2
        groups, kk = [], 0
        while kk < NK:
            g = min(o.ag, NK - kk); groups.append((kk, g)); kk += g
        for kk0, g in groups:
            a(f"s_mul_i32 s59, s48, {g}")
            a(f"s_add_u32 s59, s59, {AB*3*M + kk0*6*M}")
            for j in range(g):
                k = ND + 2*(kk0 + j)
                if j: a(f"s_add_u32 s59, s59, {48*K}")
                a(f"""
s_add_u32 s50, s59, s49
s_lshr_b32 s50, s50, 21
s_bitcmp1_b32 s58, s50
s_cselect_b32 s{32+k}, s54, s52
s_cselect_b32 s{33+k}, s55, s53
s_add_u32 s{32+k}, s{32+k}, s59
s_add_u32 s{33+k}, s{33+k}, s59
""")
    q = [("ld", k) for k in range(DEP)]
    def waitfor(item):
        n = len(q) - 1 - q.index(item)
        a(f"s_waitcnt vmcnt({n})")
        del q[:q.index(item)+1]
    late = []
    if o.late:
        late = a.l[mark_pro0:mark_pro]
        del a.l[mark_pro0:mark_pro]
    for k in range(NL):
        if NA and k + DEP == ND:
            a.l.extend(late)
            infowait()
        waitfor(("ld", k))
        if o.less and k + DEP < NL:
            a(f"s_cbranch_vccnz L_full{k}")
            a(f"s_waitcnt vmcnt({len(q) - o.less})")
            a(f"L_full{k}:")
        if k + DEP < NL:
            if k + DEP == NL-1:
                a(f"buffer_load_dword v88, v4, s[8:11], 0 offen{pol}")
                q.append(("fl", 0))
            ld(k + DEP); q.append(("ld", k + DEP))
            if k + DEP == NL-1 and not o.st2: stamp(2)
        for i in range(4):
            d = D0 + 4*k + i
            r = ACC if k == 0 else T0
            a(f"v_lshlrev_b32 v{r+2*i}, 16, v{d}")
            a(f"v_and_b32 v{r+2*i+1}, 0xffff0000, v{d}")
        if k:
            for i in range(4):
                a(f"v_pk_add_f32 v[{ACC+2*i}:{ACC+2*i+1}], v[{ACC+2*i}:{ACC+2*i+1}], v[{T0+2*i}:{T0+2*i+1}]")
    a(f"""
ds_write_b128 v5, v[8:11]
ds_write_b128 v5, v[12:15] offset:{PLANE}
v_cmp_gt_u32 vcc, 96, v88
s_cbranch_vccnz L_flagwait
L_flagok:
s_waitcnt lgkmcnt(0)
""")
    stamp(3)
    a(f"""
s_barrier
ds_read_b128 v[8:11], v3
ds_read_b128 v[12:15], v3 offset:{32*208}
s_waitcnt lgkmcnt(0)
v_pk_add_f32 v[8:9], v[8:9], v[12:13]
v_pk_add_f32 v[10:11], v[10:11], v[14:15]
s_nop 0
v_add_f32_dpp v8, v8, v8 quad_perm:[2,3,0,1] {DPPF}
v_add_f32_dpp v9, v9, v9 quad_perm:[2,3,0,1] {DPPF}
v_add_f32_dpp v10, v10, v10 quad_perm:[2,3,0,1] {DPPF}
v_add_f32_dpp v11, v11, v11 quad_perm:[2,3,0,1] {DPPF}
v_cndmask_b32 v8, v8, v10, s[56:57]
v_cndmask_b32 v9, v9, v11, s[56:57]
s_nop 0
v_add_f32_dpp v10, v8, v8 row_shl:4 row_mask:0xf bank_mask:0x5
v_add_f32_dpp v10, v9, v9 row_shr:4 row_mask:0xf bank_mask:0xa
s_nop 1
v_add_f32_dpp v10, v10, v10 row_ror:8 {DPPF}
s_nop 1
v_permlane16_swap_b32 v10, v11
v_add_f32 v10, v10, v11
s_nop 1
v_permlane32_swap_b32 v10, v11
v_add_f32 v10, v10, v11
s_mov_b64 exec, 0xff
buffer_store_dword v10, v7, s[28:31], 0 offen{pub}
""")
    stamp(4)
    order = list(range(NL))
    if o.sorder == "i":
        dfl, aw = list(range(ND)), list(range(ND, NL))
        order = []
        while dfl or aw:
            if aw and len(aw)*ND >= len(dfl)*NA: order.append(aw.pop(0))
            else: order.append(dfl.pop(0))
    elif o.sorder == "r": order = order[::-1]
    elif o.sorder and o.sorder[0] in "da":
        dfl, aw = list(range(ND)), list(range(ND, NL)); order = []
        for ch in o.sorder: order.append(dfl.pop(0) if ch == "d" else aw.pop(0))
        assert len(order) == NL
    pre = []
    if o.pre:
        src = {"a": list(range(NL-1, -1, -1)), "d": list(range(NL)), "o": order[::-1]}[o.presel]
        pre = sorted(src[:o.pre])
        order = [k for k in order if k not in pre] + pre
    a("s_mov_b64 exec, -1")
    for k in pre:
        a(f"buffer_store_dwordx4 v[{D0+4*k}:{D0+4*k+3}], v2, s[24:27], {so(k)} offen{POL[o.prepol]}")
    def unpack(k):
        for i in range(4):
            d = D0 + 4*k + i
            a(f"v_lshlrev_b32 v{T0+2*i}, 16, v{d}")
            a(f"v_and_b32 v{T0+2*i+1}, 0xffff0000, v{d}")
    unpack(order[0])
    a(f"""
s_barrier
ds_read_b128 v[8:11], v6
ds_read_b128 v[12:15], v6 offset:16
s_waitcnt lgkmcnt(0)
""")
    stamp(5)
    for n, k in enumerate(order):
        t = T0
        if pre and k == pre[0]: a(f"s_waitcnt vmcnt({n})")
        if n: unpack(k)
        for i in range(4):
            a(f"v_pk_mul_f32 v[{t+2*i}:{t+2*i+1}], v[{t+2*i}:{t+2*i+1}], v[{ACC+2*i}:{ACC+2*i+1}]")
        for i in range(4):
            d = D0 + 4*k + i
            a(f"v_cvt_pk_bf16_f32 v{d}, v{t+2*i}, v{t+2*i+1}")
        if o.sdepth and n >= o.sdepth: a(f"s_waitcnt vmcnt({o.sdepth-1})")
        a(f"buffer_store_dwordx4 v[{D0+4*k}:{D0+4*k+3}], v2, s[24:27], {so(k)} offen{POL[o.postpol] if k in pre else stk2(n, k)}")
    if o.wb:
        nwg, wv = map(int, o.wb.split(","))
        a(f"""
s_cmp_ge_u32 s2, {nwg}
s_cbranch_scc1 L_nowb
s_cmp_lg_u32 s3, {wv}
s_cbranch_scc1 L_nowb
s_waitcnt vmcnt(0)
buffer_wbl2 sc1
L_nowb:
""")
    if diag:
        stamp(6)
        a("s_waitcnt vmcnt(0)")
        stamp(7)
    if o.stamps: flush_stamps(False)
    if o.diag:
        i, j, Kk = map(int, o.diag.split(","))
        a(f"""
s_waitcnt lgkmcnt(0)
s_lshr_b32 s56, s58, 1
s_xor_b32 s56, s56, s58
s_bfe_u32 s57, s56, 0x10010
s_and_b32 s56, s56, 1
s_mul_i32 s56, s56, {o.diagok}
s_mul_i32 s57, s57, {2*o.diagok}
s_sub_u32 s58, s{(76 if o.cyc else 60)+2*j}, s{(76 if o.cyc else 60)+2*i}
{f"s_sub_u32 s58, {o.neg}, s58" if o.neg else ""}
{f"s_getreg_b32 s59, hwreg(HW_REG_XCC_ID, 0, 3)" if o.xsel else ""}
{f"s_bitcmp1_b32 {o.xsel}, s59" if o.xsel else ""}
{f"s_cselect_b32 s58, s58, 0" if o.xsel else ""}
{f"s_cmp_gt_u32 s58, {o.theta}" if o.theta else ""}
{"s_cselect_b32 s58, 10000, 0" if o.theta else f"s_mul_i32 s58, s58, {Kk}"}
s_add_u32 s58, s58, s56
s_add_u32 s58, s58, s57
s_min_u32 s58, s58, 400000
L_spin:
s_memrealtime s[56:57]
s_waitcnt lgkmcnt(0)
s_sub_u32 s56, s56, s74
s_cmp_lt_u32 s56, s58
s_cbranch_scc1 L_spin
""")
    a(f"""
L_end:
s_endpgm
L_flagwait:
buffer_load_dword v88, v4, s[8:11], 0 offen{pol}
""")
    budget("L_flagok")
    a(f"""
s_waitcnt vmcnt(0)
v_cmp_gt_u32 vcc, 96, v88
s_cbranch_vccnz L_flagwait
s_branch L_flagok
""")
    prefetch = ""
    if o.pf:
        prefetch = f"""s_getpc_b64 s[56:57]
L_pc:
v_lshlrev_b32 v20, 7, v0
s_sub_u32 s56, s56, L_pc-{NAME}
s_subb_u32 s57, s57, 0
v_min_u32 v20, L_last-{NAME}, v20
v_mov_b32 v21, s57
v_add_co_u32 v20, vcc, s56, v20
s_nop 1
v_addc_co_u32 v21, vcc, 0, v21, vcc
global_load_dword v22, v[20:21], off
"""
    tlb = ""
    if o.tlb:
        tlb = f"""s_load_dwordx2 s[52:53], s[0:1], 24
s_mov_b32 s54, {TOTAL}
s_mov_b32 s55, 0x20000
s_lshl_b32 s17, s2, 7
v_lshlrev_b32 v22, 21, v0
v_add_u32 v22, s17, v22
s_waitcnt lgkmcnt(0)
buffer_load_dword v23, v22, s[52:55], 0 offen nt
"""
    dry0 = ""
    if o.dry:
        dry0 = """s_mov_b64 s[94:95], 0
s_mov_b64 exec, 0
s_branch L_gdone
L_dryret:
s_mov_b64 s[94:95], -1
s_mov_b64 exec, -1
"""
    reps = [192, 128, 64] if o.nrep == 3 else [192, 64] if o.nrep == 2 else [192]
    atoms = "".join(f"s_atomic_add s50, s[12:13], {r}\n" for r in reps)
    V0 = o.v0
    slp = ""
    slp += "; back off until the votes should be in (early reads only slow the adds down), then read a replica\n"
    if o.sleep: slp += f"s_sub_u32 s40, s2, {V0}\ns_cmp_lt_u32 s40, {NV}\ns_cbranch_scc1 L_nosleep\ns_sleep {o.sleep}\nL_nosleep:\n"
    if o.sleep2: slp += f"s_sleep {o.sleep2}\n"
    if o.novote: atoms = ""
    if o.wst:
        tlb += f"""s_lshl_b32 s17, s2, 7
s_add_u32 s17, s17, 0xd0000
v_mov_b32 v22, s17
buffer_load_dword v23, v22, s[28:31], 0 offen nt
"""
    mark0 = len(a.l)
    def goff(i): return ("0" if i < 4 else "s44") + f" offen offset:{(i & 3)*1024}"
    a(f"""
L_ctrl:
s_load_dwordx4 s[12:15], s[0:1], 32
s_load_dwordx2 s[26:27], s[0:1], 24
s_load_dwordx4 s[36:39], s[0:1], 8
{prefetch}s_setprio 3
s_sub_u32 s40, s2, {V0}
s_mov_b32 s45, {o.pga*2*M}
s_bitcmp1_b32 s40, 0
s_cselect_b32 s45, {o.pgb*2*M}, s45
s_lshr_b32 s42, s40, 1
s_cmp_ge_u32 s40, 12
s_cselect_b32 s45, 0x80000, s45
s_cselect_b32 s42, s40, s42
s_and_b32 s41, s42, 1
s_lshl_b32 s46, s42, 14
s_add_u32 s45, s45, s46
s_lshl_b32 s46, s41, 13
s_add_u32 s45, s45, s46
s_xor_b32 s46, s45, 0x2000
s_movk_i32 s6, 0x100
s_mov_b32 s7, 0x20000
s_cmp_ge_u32 s40, {NV}
s_waitcnt lgkmcnt(0)
s_mov_b32 s4, s12
s_mov_b32 s5, s13
s_cbranch_scc1 L_noprobe
s_sub_u32 s43, s26, s20
s_sub_u32 s43, s43, 0xc00
s_and_b32 s43, s43, 0x1fff
s_cmp_le_u32 s43, 0x800
s_cselect_b32 s42, 1, s41
s_cmp_eq_u32 s42, 1
s_cselect_b64 s[54:55], s[26:27], s[20:21]
s_cmp_ge_u32 s40, 12
s_cselect_b64 s[54:55], s[14:15], s[54:55]
.p2align 5
s_load_dword s47, s[54:55], s45 glc
s_load_dword s48, s[54:55], s46 glc
s_waitcnt lgkmcnt(1)
""")
    for i in range(o.gap): a("s_getreg_b32 s51, hwreg(HW_REG_IB_STS, 8, 4)")
    a(f"""
; vote word: 4-bit sums x.lo x.hi out.lo out.hi ws, arrivals at bit 20, die rotation at bit 28
s_getreg_b32 s49, hwreg(HW_REG_XCC_ID, 0, 3)
s_sub_u32 s50, s49, s2
s_and_b32 s50, s50, 7
s_lshl_b32 s50, s50, 28
s_cmp_eq_u32 s40, 0
s_cselect_b32 s50, s50, 0
s_bitset1_b32 s50, 20
s_lshr_b32 s49, s49, 2
s_xor_b32 s49, s49, s41
s_cmp_eq_u32 s51, 0
s_cselect_b32 s51, 1, 0
s_xor_b32 s49, s49, s51
s_and_b32 s51, s40, 1
s_lshl_b32 s42, s42, 1
s_add_u32 s42, s42, s51
s_cmp_ge_u32 s40, 12
s_cselect_b32 s42, 4, s42
s_lshl_b32 s42, s42, 2
s_lshl_b32 s49, s49, s42
s_or_b32 s50, s50, s49
{atoms}L_noprobe:
s_barrier
v_mov_b32 v13, {LDS_I}
""")
    xstamp(0)
    a(f"""
s_sub_u32 s34, s2, 32
s_lshr_b32 s35, s34, 4
{region("s16", "s35", "s17")}
s_lshl_b32 s17, s34, 9
s_and_b32 s17, s17, 0x1c00
s_add_u32 s16, s16, s17
v_lshl_add_u32 v2, v0, 4, s16
v_mov_b32 v16, -1
v_mov_b32 v17, -1
v_mov_b32 v18, -1
v_mov_b32 v19, -1
v_bfe_u32 v3, v0, 1, 3
v_lshrrev_b32 v5, 4, v0
v_and_b32 v6, 1, v0
v_lshl_add_u32 v5, v5, 1, v6
v_mul_u32_u24 v5, {CS}, v5
v_lshl_add_u32 v14, v3, 2, v5
s_lshl_b32 s17, s35, 7
s_add_u32 s17, s17, {SLOT2}
v_add_u32 v4, s17, v14
s_mov_b32 s28, s14
s_mov_b32 s29, s15
s_mov_b32 s30, 0x200000
s_mov_b32 s31, 0x20000
s_movk_i32 s44, 0x1000
s_sub_u32 s43, s26, s20
s_and_b32 s43, s43, 0x1fff
s_mov_b32 s8, s38
s_mov_b32 s9, s39
s_mov_b32 s10, 1152
s_mov_b32 s11, 0x20000
s_mov_b32 s24, s36
s_mov_b32 s25, s37
s_mov_b32 s26, 1152
s_mov_b32 s27, 0x20000
s_mov_b32 s19, {o.spin}
v_lshlrev_b32 v1, 2, v0
s_bitcmp1_b32 s34, 0
s_cselect_b32 s34, -1, s34
s_cmp_ge_u32 s34, 192
s_cbranch_scc1 L_noinit
buffer_store_dwordx4 v[16:19], v2, s[28:31], 0 offen{pub}
s_and_b32 s17, s34, 15
s_cbranch_scc1 L_noinit
buffer_store_dword v16, v4, s[28:31], 0 offen{pub}
L_noinit:
""")
    def valid():
        a("s_and_b32 s92, s76, 0x0f000000")
    a(f"""
{slp}s_waitcnt lgkmcnt(0)
""")
    xstamp(1)
    stamp(1)
    for t in range(len(reps)):
        if t and o.sleep3: a(f"s_sleep {o.sleep3}")
        a(f"s_load_dword s76, s[12:13], {reps[t]}")
        a("s_waitcnt lgkmcnt(0)")
        if t < 2: xstamp(2+t)
        if o.xs or o.ispin == "try": a(f"s_mov_b32 s98, {t}")
        valid()
        a("s_cbranch_scc1 L_info")
    a(f"""
v_mov_b32 v11, 192
L_ipoll:
{"s_add_u32 s98, s98, 1" if o.xs or o.ispin == "try" else ""}
buffer_load_dword v12, v11, s[4:7], 0 offen{pol}
""")
    budget("L_info")
    a("s_waitcnt vmcnt(0)")
    a("v_readfirstlane_b32 s76, v12")
    valid()
    a(f"""
s_cbranch_scc0 L_ipoll
L_info:
s_bfe_u32 s40, s76, 0x3001c
s_add_u32 s40, s40, s2
s_and_b32 s40, s40, 7
s_lshr_b32 s41, s40, 2
s_bitcmp1_b32 s2, 3
s_cselect_b32 s42, -1, 0
s_add_u32 s45, s76, 0x6666
s_lshr_b32 s46, s45, 8
s_xor_b32 s48, s46, s45
s_cmp_gt_u32 s43, 0x1400
s_cselect_b32 s46, -1, 0
s_xor_b32 s48, s48, s46
s_add_u32 s46, s76, 0x4400
s_add_u32 s47, s76, 0x5500
s_xor_b32 s47, s47, s46
s_lshr_b32 s47, s47, 8
s_sub_u32 s49, s43, 0xc00
s_cmp_le_u32 s49, 0x800
s_cselect_b32 s48, s47, s48
s_cselect_b32 s49, s46, s45
{"s_mov_b32 s99, s48" if o.ispin else ""}
s_mov_b32 s47, 0xaaaaaaaa
{"s_not_b32 s49, s49" if o.invert else ""}
s_bitcmp1_b32 s49, 11
s_cselect_b32 s45, 0x55555555, s47
s_bitcmp1_b32 s48, 3
s_cselect_b32 s45, s42, s45
s_and_b32 s45, s45, 0xffff
s_bitcmp1_b32 s49, 15
s_cselect_b32 s46, 0x55555555, s47
s_bitcmp1_b32 s48, 7
s_cselect_b32 s46, s42, s46
s_and_b32 s46, s46, 0x3ff0000
s_or_b32 s45, s45, s46
s_mul_i32 s46, s41, 0x3ffffff
s_xor_b32 s45, s45, s46
s_bitset1_b32 s45, 31
{"s_mov_b32 s98, s45" if o.check else ""}
v_mov_b32 v12, s45
ds_write_b32 v13, v12
""")
    stamp(2)
    if o.early:
        a("s_branch L_ctrl2")
        early = a.l[mark0:]
        del a.l[mark0:]
        i = a.l.index("    @CTRL_EARLY@")
        a.l[i:i+1] = early
        a("L_ctrl2:")
    if o.stamps: a("s_mov_b32 s96, s45\ns_bfe_u32 s97, s76, 0x40010")
    a(f"""
s_cmp_ge_u32 s34, 192
s_cbranch_scc1 L_noflag
s_mov_b32 s33, 1
s_waitcnt vmcnt(0)
s_atomic_add s33, s[12:13], 0
L_noflag:
""")
    for j in range(6):
        a(f"buffer_load_dword v{52+2*j}, v1, s[8:11], 0 offen offset:{j*192}")
    a(f"""
{tlb}s_add_u32 s46, s76, 0x50000
s_bfe_u32 s46, s46, 0x10013
s_bfe_u32 s47, s2, 0x10002
s_xor_b32 s47, s47, s46
s_xor_b32 s47, s47, s41
s_lshl_b32 s47, s47, 2
s_xor_b32 s18, s2, s47
s_lshl_b32 s46, s46, 2
s_xor_b32 s40, s40, s46
{region("s16", "s18", "s17")}
v_lshl_add_u32 v2, v0, 4, s16
s_lshl_b32 s17, s18, 7
s_add_u32 s17, s17, {SLOT2}
v_add_u32 v4, s17, v14
v_and_b32 v5, 1, v0
v_lshrrev_b32 v6, 4, v0
v_lshl_add_u32 v5, v5, 2, v6
s_lshl_b32 s17, s18, 3
v_add_u32 v5, s17, v5
v_mad_u32_u24 v5, v5, 6, v3
v_lshlrev_b32 v5, 1, v5
v_cmp_gt_u32 vcc, 6, v3
v_mov_b32 v6, 0x10000
s_mul_i32 s17, s40, {CS}
v_cndmask_b32 v5, v6, v5, vcc
buffer_load_ushort v10, v5, s[24:27], 0 offen
s_add_u32 s17, s17, {SLOT2}
v_lshrrev_b32 v7, 3, v0
v_lshlrev_b32 v7, 7, v7
v_and_b32 v8, 7, v0
v_lshl_add_u32 v7, v8, 2, v7
v_add_u32 v7, s17, v7
v_mov_b32 v9, 0x7fffffc0
v_cmp_gt_u32 vcc, 32, v0
v_add_u32 v8, {8*S2}, v7
s_nop 0
v_cndmask_b32 v8, v9, v8, vcc
v_lshlrev_b32 v9, 3, v0
v_add_u32 v9, {LDS_S}, v9
s_waitcnt vmcnt(0) lgkmcnt(0)
""")
    for j in range(6):
        a(f"v_and_b32 v{53+2*j}, 0xffff0000, v{52+2*j}")
        a(f"v_lshlrev_b32 v{52+2*j}, 16, v{52+2*j}")
    a(f"""
v_lshlrev_b32 v10, 16, v10
{dry0}s_cmp_ge_u32 s18, 12
s_barrier
""")
    stamp(3)
    a("s_cbranch_scc1 L_poll2")
    G = 20
    def gl(i): a(f"buffer_load_dwordx4 v[{G+4*i}:{G+4*i+3}], v2, s[28:31], {goff(i)}{pol}")
    def pk(d, x, y):
        a(f"v_pk_add_f32 v[{d}:{d+1}], v[{x}:{x+1}], v[{y}:{y+1}]")
        a(f"v_pk_add_f32 v[{d+2}:{d+3}], v[{x+2}:{x+3}], v[{y+2}:{y+3}]")
    for i in range(8): gl(i)
    a("s_mov_b64 s[42:43], -1")
    a("s_branch L_gsum")
    a("L_gagain:")
    a("s_mov_b64 exec, s[40:41]")
    for i in range(8): gl(i)
    a(f"v_max3_u32 v12, v{G}, v{G+1}, v{G+2}")
    for r in range(G+3, G+31, 2): a(f"v_max3_u32 v12, v12, v{r}, v{r+1}")
    a(f"v_max_u32 v12, v12, v{G+31}")
    a("v_cmp_eq_u32 s[42:43], -1, v12")
    budget("L_gdone")
    if o.g2:
        for i in range(8): gl(i)
        a("L_gsum2:")
        a("s_waitcnt vmcnt(14)"); pk(16, G, G+4)
        a("s_waitcnt vmcnt(12)"); pk(64, G+8, G+12); pk(16, 16, 64)
        a("s_waitcnt vmcnt(10)"); pk(68, G+16, G+20)
        a("s_waitcnt vmcnt(8)"); pk(72, G+24, G+28); pk(68, 68, 72); pk(16, 16, 68)
        a("s_branch L_gchk")
    a("L_gsum:")
    a("s_waitcnt vmcnt(6)"); pk(16, G, G+4)
    a("s_waitcnt vmcnt(4)"); pk(64, G+8, G+12); pk(16, 16, 64)
    a("s_waitcnt vmcnt(2)"); pk(68, G+16, G+20)
    a("s_waitcnt vmcnt(0)"); pk(72, G+24, G+28); pk(68, 68, 72); pk(16, 16, 68)
    a("L_gchk:")
    a(f"""
v_cmp_u_f32 vcc, v16, v17
v_cmp_u_f32 s[40:41], v18, v19
s_or_b64 s[40:41], s[40:41], vcc
s_cbranch_scc0 L_gdone
s_cmp_lg_u64 s[42:43], 0
s_cbranch_scc1 L_gagain
L_gdone:
s_mov_b64 exec, {"s[94:95]" if o.dry else "-1"}
v_permlane32_swap_b32 v16, v18
v_permlane32_swap_b32 v17, v19
v_add_f32 v16, v16, v18
v_add_f32 v17, v17, v19
s_nop 1
v_permlane16_swap_b32 v16, v17
v_add_f32 v16, v16, v17
s_nop 1
v_add_f32_dpp v16, v16, v16 row_ror:8 {DPPF}
s_nop 1
v_add_f32_dpp v16, v16, v16 row_ror:4 {DPPF}
s_nop 1
v_add_f32_dpp v16, v16, v16 row_ror:2 {DPPF}
v_mul_f32 v16, 0x36800000, v16
v_cvt_pk_bf16_f32 v16, v16, v16
v_lshlrev_b32 v16, 16, v16
v_mul_f32 v16, v16, v10
s_nop 1
v_add_f32_dpp v16, v16, v16 quad_perm:[1,0,3,2] {DPPF}
v_mov_b32 v17, v16
s_nop 1
v_permlane16_swap_b32 v16, v17
v_add_f32 v16, v16, v17
v_mov_b32 v17, v16
s_nop 1
v_permlane32_swap_b32 v16, v17
v_add_f32 v16, v16, v17
buffer_store_dword v16, v4, s[28:31], 0 offen{pub}
""")
    stamp(4)
    a(f"""
L_poll2:
buffer_load_dword v16, v7, s[28:31], 0 offen{pol}
buffer_load_dword v17, v8, s[28:31], 0 offen{pol}
""")
    budget("L_p2done")
    a(f"""
s_waitcnt vmcnt(0)
v_max_u32 v12, v16, v17
v_cmp_eq_u32 vcc, -1, v12
s_cbranch_vccnz L_poll2
L_p2done:
s_waitcnt vmcnt(0)
""")
    stamp(5)
    a(f"""
v_add_f32 v16, v16, v17
s_nop 1
v_add_f32_dpp v16, v16, v16 row_ror:8 {DPPF}
v_mov_b32 v17, v16
s_nop 1
v_permlane16_swap_b32 v16, v17
v_add_f32 v16, v16, v17
v_mov_b32 v17, v16
s_nop 1
v_permlane32_swap_b32 v16, v17
v_add_f32 v16, v16, v17
v_cvt_pk_bf16_f32 v16, v16, v16
v_lshlrev_b32 v16, 16, v16
v_mul_f32 v17, 0xbfb8aa3b, v16
v_exp_f32 v17, v17
s_nop 0
v_add_f32 v17, 1.0, v17
v_rcp_f32 v17, v17
s_nop 0
v_mul_f32 v16, v16, v17
v_cvt_pk_bf16_f32 v16, v16, v16
v_lshlrev_b32 v16, 16, v16
s_nop 1
v_mul_f32_dpp v18, v16, v52 row_newbcast:0 {DPPF}
v_mul_f32_dpp v19, v16, v53 row_newbcast:0 {DPPF}
""")
    for j in range(1, 6):
        a(f"v_fmac_f32_dpp v18, v16, v{52+2*j} row_newbcast:{j} {DPPF}")
        a(f"v_fmac_f32_dpp v19, v16, v{53+2*j} row_newbcast:{j} {DPPF}")
    a(f"""
v_cvt_pk_bf16_f32 v18, v18, v19
v_and_b32 v19, 0xffff0000, v18
v_lshlrev_b32 v18, 16, v18
v_mul_f32 v19, 0xbfb8aa3b, v19
v_mul_f32 v18, 0xbfb8aa3b, v18
v_exp_f32 v19, v19
v_exp_f32 v18, v18
v_add_f32 v19, 1.0, v19
v_add_f32 v18, 1.0, v18
v_rcp_f32 v19, v19
v_rcp_f32 v18, v18
s_nop 0
v_cvt_pk_bf16_f32 v18, v18, v19
v_and_b32 v19, 0xffff0000, v18
v_lshlrev_b32 v18, 16, v18
ds_write_b64 v9, v[18:19]
{"s_cbranch_execz L_dryret" if o.dry else ""}
s_waitcnt lgkmcnt(0)
""")
    stamp(6)
    a("s_barrier")
    if o.check:
        a(f"""
s_cmp_lg_u32 s2, 0
s_cbranch_scc1 L_nocheck
s_load_dwordx2 s[54:55], s[0:1], 24
s_memrealtime s[58:59]
s_waitcnt lgkmcnt(0)
L_pw:
s_memrealtime s[60:61]
s_waitcnt lgkmcnt(0)
s_sub_u32 s60, s60, s58
s_cmp_lt_u32 s60, 2500
s_cbranch_scc1 L_pw
s_mov_b32 s70, 0
s_mov_b32 s62, 0
s_mov_b32 s63, 0
L_pl:
s_add_u32 s64, s63, 0x2000
s_load_dword s65, s[54:55], s63 glc
s_load_dword s66, s[54:55], s64 glc
s_waitcnt lgkmcnt(0)
s_memtime s[58:59]
s_waitcnt lgkmcnt(0)
""")
        for r in range(4): a(f"s_load_dword s65, s[54:55], s63 glc\ns_waitcnt lgkmcnt(0)")
        a("s_memtime s[60:61]\ns_waitcnt lgkmcnt(0)")
        for r in range(4): a(f"s_load_dword s65, s[54:55], s64 glc\ns_waitcnt lgkmcnt(0)")
        a(f"""
s_memtime s[66:67]
s_waitcnt lgkmcnt(0)
s_sub_u32 s66, s66, s60
s_sub_u32 s60, s60, s58
s_cmp_gt_u32 s60, s66
s_cselect_b32 s65, 1, 0
s_lshl_b32 s65, s65, s62
s_or_b32 s70, s70, s65
s_add_u32 s63, s63, 0x200000
s_add_u32 s62, s62, 1
s_cmp_lt_u32 s62, 24
s_cbranch_scc1 L_pl
s_xor_b32 s72, s70, s98
s_and_b32 s72, s72, 0xfffe00
s_bcnt1_i32_b32 s74, s72
v_mov_b32 v11, 48
v_mov_b32 v20, s70
v_mov_b32 v21, s98
v_mov_b32 v22, s76
v_mov_b32 v23, s74
s_mov_b64 exec, 1
buffer_store_dwordx4 v[20:23], v11, s[4:7], 0 offen
s_mul_i32 s74, s74, 10000
s_memrealtime s[78:79]
s_waitcnt lgkmcnt(0)
L_pv:
s_memrealtime s[80:81]
s_waitcnt lgkmcnt(0)
s_sub_u32 s80, s80, s78
s_cmp_lt_u32 s80, s74
s_cbranch_scc1 L_pv
L_nocheck:
""")
    if o.ispin:
        if o.ispin == "ok": a("s_andn2_b32 s56, 10, s99\ns_bcnt1_i32_b32 s56, s56")
        elif o.ispin == "okA": a("s_bfe_u32 s56, s99, 0x10001\ns_xor_b32 s56, s56, 1")
        elif o.ispin.startswith("ptr"):
            _, off, sh, w = o.ispin.split(",")
            a(f"s_load_dwordx2 s[56:57], s[0:1], {off}\ns_waitcnt lgkmcnt(0)\ns_bfe_u32 s56, s56, {(int(w) << 16) | int(sh)}")
        elif o.ispin == "try": a("s_min_u32 s56, s98, 6")
        elif o.ispin == "rot": a("s_bfe_u32 s56, s76, 0x3001c")
        elif o.ispin == "split":
            a("s_lshr_b32 s56, s76, 8\ns_xor_b32 s56, s56, s76\ns_lshr_b32 s57, s76, 16\ns_xor_b32 s57, s57, s76\ns_or_b32 s56, s56, s57\ns_and_b32 s56, s56, 0xaa\ns_bcnt1_i32_b32 s56, s56")
        a(f"""
s_mul_i32 s56, s56, 1000
s_add_u32 s56, s56, 1000
s_memrealtime s[52:53]
s_waitcnt lgkmcnt(0)
L_xspin:
s_memrealtime s[54:55]
s_waitcnt lgkmcnt(0)
s_sub_u32 s54, s54, s52
s_cmp_lt_u32 s54, s56
s_cbranch_scc1 L_xspin
""")
    if o.stamps:
        a("s_getreg_b32 s75, hwreg(HW_REG_XCC_ID)")
        a("s_and_b32 s74, s96, 0xffffff\ns_lshl_b32 s97, s97, 24\ns_or_b32 s74, s74, s97")
        a("s_cmp_ge_u32 s18, 12\ns_cselect_b32 s68, 0, s68\ns_cselect_b32 s69, 0, s69")
        if o.xs:
            a("s_waitcnt lgkmcnt(0)")
            for i in range(8): a(f"s_mov_b32 s{66+i}, s{80+i}")
            a("s_mov_b32 s74, s98")
        flush_stamps(True)
    a(f"""
L_last:
s_endpgm
.section .rodata,"a"
.p2align 6
.amdhsa_kernel {NAME}
.amdhsa_next_free_vgpr 96
.amdhsa_next_free_sgpr {100 if diag or o.check or o.ispin else 96}
.amdhsa_accum_offset 96
.amdhsa_group_segment_fixed_size 0
.amdhsa_kernarg_size 48
.amdhsa_user_sgpr_count 2
.amdhsa_user_sgpr_kernarg_segment_ptr 1
.amdhsa_system_sgpr_workgroup_id_x 1
.amdhsa_float_denorm_mode_32 3
.end_amdhsa_kernel
""")
    kern = f"kernel={NAME} " if o.aslist else ""
    return HEADER + f"; @launch {kern}grid=({NWG},1,1) block=(832,1,1) lds={LDS_BYTES}\n" + DESC + a.text()

if __name__ == "__main__":
    p = argparse.ArgumentParser()
    p.add_argument("-o", default="-")
    p.add_argument("--ld", default="nt")
    p.add_argument("--stmix", default="s")
    p.add_argument("--sorder", default="i")
    p.add_argument("--sdepth", type=int, default=0)
    p.add_argument("--depth", type=int, default=4)
    p.add_argument("--nd", type=int, default=6)
    p.add_argument("--abase", type=int, default=6)
    p.add_argument("--pga", type=int, default=12)
    p.add_argument("--pgb", type=int, default=18)
    p.add_argument("--gap", type=int, default=3)
    p.add_argument("--spin", type=int, default=200000)
    p.add_argument("--stamps", action="store_true")
    p.add_argument("--st2", default="")
    p.add_argument("--diag", default="")
    p.add_argument("--sleep3", type=int, default=0)
    p.add_argument("--wb", default="")
    p.add_argument("--wst", type=int, default=0)
    p.add_argument("--dp5", type=int, default=0)
    p.add_argument("--an", type=int, default=0)
    p.add_argument("--late", type=int, default=0)
    p.add_argument("--novote", action="store_true")
    p.add_argument("--nrep", type=int, default=3)
    p.add_argument("--v0", type=int, default=16)
    p.add_argument("--dry", type=int, default=0)
    p.add_argument("--g2", type=int, default=1)
    p.add_argument("--ag", type=int, default=2)
    p.add_argument("--c", type=int, default=6)
    p.add_argument("--aslist", action="store_true")
    p.add_argument("--neg", type=int, default=0)
    p.add_argument("--xsel", default="")
    p.add_argument("--less", type=int, default=0)
    p.add_argument("--lessodd", action="store_true")
    p.add_argument("--pola", default="n")
    p.add_argument("--pold", default="s")
    p.add_argument("--cyc", action="store_true")
    p.add_argument("--tlb", action="store_true")
    p.add_argument("--theta", type=int, default=0)
    p.add_argument("--invert", action="store_true")
    p.add_argument("--check", default="")
    p.add_argument("--pre", type=int, default=0)
    p.add_argument("--presel", default="a")
    p.add_argument("--prepol", default="s")
    p.add_argument("--postpol", default="s")
    p.add_argument("--diagok", type=int, default=0)
    p.add_argument("--ispin", default="")
    p.add_argument("--xs", action="store_true")
    p.add_argument("--pf", type=int, default=1)
    p.add_argument("--early", type=int, default=1)
    p.add_argument("--sleep", type=int, default=12)
    p.add_argument("--sleep2", type=int, default=12)
    o = p.parse_args()
    t = gen(o)
    if o.o == "-": sys.stdout.write(t)
    else: open(o.o, "w").write(t)
```
